```python
import torch

def _softmax(x, axis=-1):
    return torch.softmax(x, dim=axis)
def _gelu(x):
    return torch.nn.functional.gelu(x, approximate="tanh")
def _silu(x):
    return torch.nn.functional.silu(x)
def _sigmoid(x):
    return torch.sigmoid(x)
def _layernorm(x, axis=-1, eps=1e-5):
    m = x.mean(dim=axis, keepdim=True)
    v = x.var(dim=axis, keepdim=True, unbiased=False)
    return (x - m) / torch.sqrt(v + eps)
def _scatter_add(tgt, idx, src, axis=0):
    return tgt.clone().index_add_(axis, idx, src)
def _segment_sum(src, seg, n):
    out = torch.zeros((n,) + src.shape[1:], dtype=src.dtype)
    return out.index_add_(0, seg, src)
def _pad(x, pw):
    flat = tuple(v for pair in reversed(pw) for v in pair)
    return torch.nn.functional.pad(x, flat)

kernel_name = 'sequential_preLN__compressed_kv_cla__swiglu_ffn__prompt'

def setup_inputs():

    _w = (lambda a: (lambda t: t.to(torch.bfloat16) if t.is_floating_point() else t)(torch.as_tensor(a)))
    def _A_setup():
        B, H, Sq, Sk, D, M = 1, 32, 2048, 2048, 128, 576
        Dc = 4 * D
        return {
            "x": _w((lambda *s: torch.randn(*s, dtype=torch.bfloat16) * 0.05)(B, Sq, M)),
            "c_kv": _w((lambda *s: torch.randn(*s, dtype=torch.bfloat16) * 0.4)(B, Sk, Dc)),
            "w_q": _w((lambda *s: torch.randn(*s, dtype=torch.bfloat16) * 1.6)(M, H, D) * (M ** -0.5)),
            "w_uk": _w((lambda *s: torch.randn(*s, dtype=torch.bfloat16) * 1.6)(Dc, H, D) * (Dc ** -0.5)),
            "w_uv": _w((lambda *s: torch.randn(*s, dtype=torch.bfloat16) * 0.4)(Dc, H, D) * (Dc ** -0.5)),
            "w_o": _w((lambda *s: torch.randn(*s, dtype=torch.bfloat16) * 0.4)(H, D, M) * ((H * D) ** -0.5)),
        }
    _A_in = _A_setup()

    def _B_setup():
        B, S, D, F = 1, 2048, 576, 4608
        return {
            "x": _w((lambda *s: torch.randn(*s, dtype=torch.bfloat16) * 0.05)(B, S, D)),
            "w_gate": _w((lambda *s: torch.randn(*s, dtype=torch.bfloat16) * 0.05)(D, F)),
            "w_up": _w((lambda *s: torch.randn(*s, dtype=torch.bfloat16) * 0.05)(D, F)),
            "w_down": _w((lambda *s: torch.randn(*s, dtype=torch.bfloat16) * 0.05)(F, D)),
        }
    _B_in = _B_setup()

    return {
        "A_x": _A_in["x"],
        "A_c_kv": _A_in["c_kv"],
        "A_w_q": _A_in["w_q"],
        "A_w_uk": _A_in["w_uk"],
        "A_w_uv": _A_in["w_uv"],
        "A_w_o": _A_in["w_o"],
        "B_x": _B_in["x"],
        "B_w_gate": _B_in["w_gate"],
        "B_w_up": _B_in["w_up"],
        "B_w_down": _B_in["w_down"],
    }

def reference(A_x, A_c_kv, A_w_q, A_w_uk, A_w_uv, A_w_o, B_x, B_w_gate, B_w_up, B_w_down):
    def _A_ref(x, c_kv, w_q, w_uk, w_uv, w_o):
        B, Sq, M = x.shape[0], x.shape[1], x.shape[2]
        Sk = c_kv.shape[1]
        H, D = w_q.shape[1], w_q.shape[2]
        q = torch.einsum("bqm,mhd->bhqd", x, w_q)
        k = torch.einsum("bkc,chd->bhkd", c_kv, w_uk)
        v = torch.einsum("bkc,chd->bhkd", c_kv, w_uv)
        scores = torch.einsum("bhqd,bhkd->bhqk", q, k) * (D ** -0.5)
        off = Sk - Sq
        qi = torch.arange(Sq)[:, None]
        kj = torch.arange(Sk)[None, :]
        cmask = kj <= (qi + off)
        scores = torch.where(cmask[None, None], scores, -1e9)
        p = _softmax(scores, axis=-1)
        ctx = torch.einsum("bhqk,bhkd->bhqd", p, v)
        return torch.einsum("bhqd,hdm->bqm", ctx, w_o)

    def _B_ref(x, w_gate, w_up, w_down):
        g = _silu(x @ w_gate)
        u = x @ w_up
        return (g * u) @ w_down

    x = A_x
    h = x + _A_ref(_layernorm(x, axis=-1), A_c_kv, A_w_q, A_w_uk, A_w_uv, A_w_o)
    h2 = h + _B_ref(_layernorm(h, axis=-1), B_w_gate, B_w_up, B_w_down)
    return h2
```

```python
import re

def v(i, n=1):
    return f"v{i}" if n == 1 else f"v[{i}:{i+n-1}]"
def a(i, n=1):
    return f"a{i}" if n == 1 else f"a[{i}:{i+n-1}]"
def s(i, n=1):
    return f"s{i}" if n == 1 else f"s[{i}:{i+n-1}]"

_REG = re.compile(r'(?<![\w.])([vas])(\d+)\b|(?<![\w.])([vas])\[(\d+):(\d+)\]|\b(vcc|exec|m0|vcc_lo|vcc_hi|exec_lo|exec_hi|scc)\b')

def regs_of(tok):
    out = []
    for m in _REG.finditer(tok):
        if m.group(1):
            out.append((m.group(1), int(m.group(2))))
        elif m.group(3):
            for i in range(int(m.group(4)), int(m.group(5)) + 1):
                out.append((m.group(3), i))
        else:
            g = m.group(6)
            if g.startswith('vcc'):
                out.append(('s', 'vcc'))
            elif g.startswith('exec'):
                out.append(('s', 'exec'))
            else:
                out.append(('s', g))
    return out

TRANS = ('v_exp_f32', 'v_log_f32', 'v_rcp_f32', 'v_rsq_f32', 'v_sqrt_f32', 'v_sin_f32', 'v_cos_f32', 'v_rcp_iflag_f32')

class Ins:
    __slots__ = ('text', 'mn', 'cls', 'defs', 'uses', 'passes', 'cuse', 'abuse', 'ws', 'wide_store_data', 'dpp', 'sgpr_addr_uses')
    def __init__(self, text):
        self.text = text
        t = text.split(';')[0].strip()
        t = re.sub(r'\s(op_sel|op_sel_hi|neg_lo|neg_hi|quad_perm):\[[^\]]*\]', ' ', t)
        if 'quad_perm' in text: t += ' row_'
        parts = t.split(None, 1)
        self.mn = mn = parts[0]
        ops = [o.strip() for o in parts[1].split(',')] if len(parts) > 1 else []
        self.defs, self.uses = [], []
        self.passes = 0
        self.cuse, self.abuse = [], []
        self.ws = 1
        self.wide_store_data = []
        self.dpp = ('_dpp' in mn) or ('quad_perm' in t) or ('row_' in t)
        base = mn.replace('_e32', '').replace('_e64', '').replace('_dpp', '').replace('_sdwa', '')
        if mn == 's_nop':
            self.cls = 'nop'; self.ws = int(ops[0], 0) + 1
        elif mn.startswith('v_mfma'):
            self.cls = 'mfma'
            self.passes = 8 if '32x32' in mn else 4
            self.defs = regs_of(ops[0])
            self.abuse = regs_of(ops[1]) + regs_of(ops[2])
            self.cuse = regs_of(ops[3])
            self.uses = self.abuse + self.cuse
        elif mn.startswith('v_'):
            self.cls = 'trans' if base in TRANS else 'valu'
            if mn.startswith('v_cmp'):
                self.defs = regs_of(ops[0]); self.uses = sum((regs_of(o) for o in ops[1:]), [])
            elif mn.startswith('v_permlane') and 'swap' in mn:
                self.defs = regs_of(ops[0]) + regs_of(ops[1]); self.uses = list(self.defs)
                self.cls = 'permlane'
            elif base in ('v_add_co_u32', 'v_sub_co_u32', 'v_addc_co_u32', 'v_subb_co_u32', 'v_subrev_co_u32', 'v_mad_u64_u32'):
                self.defs = regs_of(ops[0]) + regs_of(ops[1]); self.uses = sum((regs_of(o) for o in ops[2:]), [])
            elif base in ('v_readfirstlane_b32', 'v_readlane_b32'):
                self.cls = 'readlane'
                self.defs = regs_of(ops[0]); self.uses = sum((regs_of(o) for o in ops[1:]), [])
            else:
                self.defs = regs_of(ops[0]); self.uses = sum((regs_of(o) for o in ops[1:]), [])
                if base in ('v_fmac_f32', 'v_dot2c_f32_bf16', 'v_pk_fmac_f16', 'v_writelane_b32') or self.dpp:
                    self.uses += self.defs
                if base == 'v_cndmask_b32' and len(ops) == 3:
                    self.uses.append(('s', 'vcc'))
        elif mn.startswith('buffer_') or mn.startswith('global_') or mn.startswith('flat_'):
            islds = (' lds' in t) or ('load_lds' in mn)
            if islds:
                self.cls = 'ldsdma'
                self.uses = sum((regs_of(o) for o in ops), []) + [('s', 'm0')]
            elif 'load' in mn:
                self.cls = 'vload'
                self.defs = regs_of(ops[0]); self.uses = sum((regs_of(o) for o in ops[1:]), [])
            else:
                self.cls = 'vstore'
                self.uses = sum((regs_of(o) for o in ops), [])
                if 'x4' in mn or 'x3' in mn:
                    self.wide_store_data = regs_of(ops[0]) if mn.startswith('buffer_') else regs_of(ops[1])
        elif mn.startswith('ds_'):
            if 'read' in mn or 'permute' in mn or 'swizzle' in mn:
                self.cls = 'dsread'
                self.defs = regs_of(ops[0]); self.uses = sum((regs_of(o) for o in ops[1:]), [])
            else:
                self.cls = 'dswrite'
                self.uses = sum((regs_of(o) for o in ops), [])
        elif mn.startswith('s_'):
            self.cls = 'salu'
            if mn.startswith('s_cmp') or mn.startswith('s_bitcmp') or mn.startswith('s_cbranch') or mn in ('s_branch', 's_setpc_b64', 's_barrier', 's_waitcnt', 's_endpgm', 's_setprio', 's_sleep'):
                self.uses = sum((regs_of(o) for o in ops), [])
            else:
                self.defs = regs_of(ops[0]) if ops else []
                self.uses = sum((regs_of(o) for o in ops[1:]), [])
                if 'saveexec' in mn:
                    self.defs.append(('s', 'exec'))
        else:
            raise ValueError("unknown instr: " + text)

VALU_LIKE = ('valu', 'trans', 'permlane', 'readlane')

def required_gap(p, c):
    need = 0
    pd, cd, cu = set(p.defs), set(c.defs), set(c.uses)
    if p.cls in VALU_LIKE:
        vd = {r for r in pd if r[0] in 'va'}
        sd = {r for r in pd if r[0] == 's'}
        if c.cls == 'mfma' and vd & cu: need = max(need, 2)
        if c.cls == 'readlane' and vd & cu: need = max(need, 1)
        if c.cls == 'permlane' and vd & cu: need = max(need, 2)
        if c.cls in VALU_LIKE and c.dpp and vd & cu: need = max(need, 2)
        if p.cls == 'trans' and c.cls in ('valu', 'permlane', 'readlane') and vd & (cu | cd): need = max(need, 1)
        if p.cls == 'trans' and c.cls in ('vstore', 'dswrite') and vd & cu: need = max(need, 1)
        if sd:
            if c.cls in VALU_LIKE and sd & cu: need = max(need, 2 if c.cls != 'readlane' else 4)
            if c.cls in ('vload', 'vstore', 'ldsdma') and sd & cu: need = max(need, 5)
            if ('s', 'exec') in sd and c.cls == 'mfma': need = max(need, 4)
    if p.cls == 'mfma':
        n_full = {4: 8, 8: 12}[p.passes]
        if c.cls in VALU_LIKE and pd & (cu | cd): need = max(need, n_full)
        if c.cls in ('vload', 'vstore', 'dsread', 'dswrite', 'ldsdma') and pd & (cu | cd): need = max(need, n_full)
        if c.cls == 'mfma':
            if pd & set(c.abuse): need = max(need, n_full)
            if pd & set(c.cuse):
                if not (p.defs == c.cuse and p.passes == c.passes):
                    need = max(need, {4: 6, 8: 10}[p.passes])
        if c.cls in VALU_LIKE and set(p.cuse) & cd: need = max(need, {4: 3, 8: 7}[p.passes])
    if p.cls == 'salu' and ('s', 'm0') in pd and c.cls == 'ldsdma': need = max(need, 1)
    if p.wide_store_data:
        if set(p.wide_store_data) & cd:
            need = max(need, 2 if c.cls in VALU_LIKE else 1)
    return need

class Kernel:
    def __init__(self, name):
        self.name = name
        self.items = []
        self.nlabel = 0
        self.nops_inserted = 0
    def raw(self, text):
        self.items.append(text)
    def comment(self, text):
        self.items.append("    ; " + text)
    def newlabel(self, base="L"):
        self.nlabel += 1
        return f"L_{self.name}_{base}_{self.nlabel}"
    def label(self, l):
        self.items.append(l + ":")
    def __call__(self, text):
        for line in text.strip().split('\n'):
            line = line.strip()
            if not line or line.startswith(';'):
                continue
            if line.endswith(':'):
                self.items.append(line); continue
            ins = Ins(line)
            dist = 0; need = 0
            for it in reversed(self.items):
                if isinstance(it, str):
                    continue
                g = required_gap(it, ins)
                if g - dist > need: need = g - dist
                dist += it.ws
                if dist >= 24: break
            while need > 0:
                n = min(need, 16)
                self.items.append(Ins(f"s_nop {n-1}"))
                self.nops_inserted += 1
                need -= n
            self.items.append(ins)
    def check_loop(self, start_label, end_idx=None):
        idx = self.items.index(start_label + ":")
        body = [it for it in self.items[idx:] if not isinstance(it, str)]
        seq = body + body
        n = len(body)
        problems = []
        for j in range(n, min(2 * n, n + 30)):
            dist = 0
            for i in range(j - 1, max(-1, j - 30), -1):
                g = required_gap(seq[i], seq[j])
                if g > dist:
                    problems.append((seq[i].text, seq[j].text, g, dist))
                dist += seq[i].ws
                if dist >= 24: break
        assert not problems, f"back-edge hazards: {problems}"
    def text(self):
        out = []
        for it in self.items:
            out.append(it if isinstance(it, str) else "    " + it.text)
        return "\n".join(out)
    def count(self):
        return sum(1 for it in self.items if not isinstance(it, str))

def kernel_text(k, vgpr, sgpr=102, accum=None, agprs=0):
    if accum is None:
        accum = (vgpr + 3) // 4 * 4
    nfv = accum + agprs if agprs else vgpr
    hdr = f""".text
.globl {k.name}
.p2align 8
.type {k.name},@function
{k.name}:
"""
    desc = f"""
.section .rodata,"a"
.p2align 6
.amdhsa_kernel {k.name}
  .amdhsa_next_free_vgpr {nfv}
  .amdhsa_next_free_sgpr {sgpr}
  .amdhsa_accum_offset {accum}
  .amdhsa_group_segment_fixed_size 0
  .amdhsa_kernarg_size 104
  .amdhsa_user_sgpr_count 2
  .amdhsa_user_sgpr_kernarg_segment_ptr 1
  .amdhsa_system_sgpr_workgroup_id_x 1
.end_amdhsa_kernel
"""
    return hdr + k.text() + "\n" + desc

B128_GROUPS = [list(range(0,4))+list(range(12,16))+list(range(20,28)),
               list(range(4,12))+list(range(16,20))+list(range(28,32)),
               list(range(32,36))+list(range(44,48))+list(range(52,60)),
               list(range(36,44))+list(range(48,52))+list(range(60,64))]
def conflicts(kind, addrs):
    if kind == 'b128': groups, nb, w = B128_GROUPS, 64, 4
    elif kind == 'b64': groups, nb, w = [list(range(32)), list(range(32,64))], 64, 2
    elif kind == 'b32' or kind == 'w32': groups, nb, w = [list(range(32)), list(range(32,64))], 32, 1
    elif kind == 'w128': groups, nb, w = [list(range(8*i, 8*i+8)) for i in range(8)], 32, 4
    elif kind == 'w64': groups, nb, w = [list(range(16*i, 16*i+16)) for i in range(4)], 32, 2
    extra = 0
    for g in groups:
        banks = {}
        for l in g:
            for j in range(w):
                d = addrs[l] // 4 + j
                banks.setdefault(d % nb, set()).add(d)
        extra += max(len(x) for x in banks.values()) - 1
    return extra

class Stamps:
    def __init__(self, k, on, base=60):
        self.k, self.on, self.base, self.n = k, on, base, 0
    def stamp(self, real=False):
        if not self.on: return
        self.k(f"{'s_memrealtime' if real else 's_memtime'} {s(self.base + 2*self.n, 2)}")
        self.n += 1
    def dump(self, ws_pair, wave_sgpr, off, vtmp, srd_base=56, extra=()):
        if not self.on: return
        k = self.k
        k("s_waitcnt lgkmcnt(0) vmcnt(0)")
        self.stamp()
        self.stamp(True)
        k("s_waitcnt lgkmcnt(0)")
        k(f"s_add_u32 {s(srd_base)}, {s(ws_pair)}, {off}")
        k(f"s_addc_u32 {s(srd_base+1)}, {s(ws_pair+1)}, 0")
        k(f"s_mov_b32 {s(srd_base+2)}, {256*16*128}")
        k(f"s_mov_b32 {s(srd_base+3)}, 0x00020000")
        tt = s(srd_base-1)
        k(f"s_lshl_b32 {tt}, s2, 4")
        k(f"s_add_u32 {tt}, {tt}, {s(wave_sgpr)}")
        k(f"s_lshl_b32 {tt}, {tt}, 7")
        k(f"v_mov_b32 {v(vtmp)}, 0")
        for i in range(self.n):
            k(f"v_mov_b32 {v(vtmp+1)}, {s(self.base+2*i)}")
            k(f"buffer_store_dword {v(vtmp+1)}, {v(vtmp)}, {s(srd_base,4)}, {tt} offen offset:{4*i}")
        for i, sr_ in enumerate(extra):
            k(f"v_mov_b32 {v(vtmp+1)}, {s(sr_)}")
            k(f"buffer_store_dword {v(vtmp+1)}, {v(vtmp)}, {s(srd_base,4)}, {tt} offen offset:{64+4*i}")
```

```python
from asmlib import *
from layout import *
from k_sg2 import srd
import math, struct

def f32(x): return "0x%08x" % struct.unpack('<I', struct.pack('<f', x))[0]

def gen_attn(name, exp=''):
    k = Kernel(name)
    THR = 8.0
    QA = 131072
    MF = "v_mfma_f32_16x16x32_bf16"
    S_WQ, S_XN, S_KV, S_C = 8, 12, 16, 20
    sWS, sQp, sMask, sForce, sTmp2 = 24, 26, 28, 30, 32
    (sH, sP, sWV, sW4, sG, sT, sT2, sK0, sR0, sFirst, sPend, sIt, sNB, sKVb, sLg, sRA, sCo, sWo, sXo, sNBg, sSw, sDk, sDv, sH3) = range(34, 58)
    assert 'stamp' not in exp or True
    vLane, vL16, vD, vMax, vT = 1, 2, 3, 4, 5
    vL, vLB, vM, vAl = 14, 16, 18, 20
    vKa = 22
    vVa = 26
    vWd, vWd2 = 30, 31
    vQ = 32
    vS = 64
    vP = 96
    vN = 112
    import re as _re
    m_ = _re.search(r'nb(\d+)', exp); NBUF = int(m_.group(1)) if m_ else 8
    m_ = _re.search(r'ld(\d+)', exp); LEAD = int(m_.group(1)) if m_ else 5
    vF = 128
    vO = 128 + 4 * NBUF
    vOne = 120
    vLa = vO + 64
    nv = vO + 72
    st_ = Stamps(k, 'stamp' in exp, base=64)
    done = k.newlabel("done")
    k(f"s_cmp_ge_u32 s2, 256")
    k(f"s_cbranch_scc1 {done}")
    st_.stamp(True); st_.stamp()
    k(f"s_load_dwordx2 {s(sWS,2)}, s[0:1], 96")
    k(f"s_load_dwordx2 {s(sQp,2)}, s[0:1], 16")
    k(f"v_lshrrev_b32 {v(vT)}, 6, v0")
    k(f"v_and_b32 {v(vLane)}, 63, v0")
    k(f"v_readfirstlane_b32 {s(sWV)}, {v(vT)}")
    k(f"s_and_b32 {s(sH)}, s2, 7")
    k(f"s_lshl_b32 {s(sH)}, {s(sH)}, 2")
    k(f"s_lshr_b32 {s(sT)}, s2, 3")
    k(f"s_and_b32 {s(sT2)}, {s(sT)}, 3")
    k(f"s_add_u32 {s(sH)}, {s(sH)}, {s(sT2)}")
    k(f"s_lshr_b32 {s(sP)}, {s(sT)}, 2")
    k(f"s_and_b32 {s(sW4)}, {s(sWV)}, 3")
    k(f"s_lshr_b32 {s(sG)}, {s(sWV)}, 2")
    k(f"v_lshlrev_b32 {v(vL16)}, 4, {v(vLane)}")
    k(f"s_sub_u32 {s(sRA)}, 15, {s(sP)}")
    k(f"s_lshl_b32 {s(sRA)}, {s(sRA)}, 7")
    k(f"s_lshl_b32 {s(sT)}, {s(sW4)}, 5")
    k(f"s_add_u32 {s(sRA)}, {s(sRA)}, {s(sT)}")
    k(f"s_lshl_b32 {s(sR0)}, {s(sP)}, 7")
    k(f"s_add_u32 {s(sR0)}, {s(sR0)}, {s(sT)}")
    k(f"s_lshl_b32 {s(sNB)}, {s(sP)}, 1")
    k(f"s_add_u32 {s(sNB)}, {s(sNB)}, 2")
    k(f"s_cmp_eq_u32 {s(sG)}, 0")
    k(f"s_cselect_b32 {s(sR0)}, {s(sRA)}, {s(sR0)}")
    k(f"s_cselect_b32 {s(sNBg)}, 99, {s(sNB)}")
    k(f"s_sub_u32 {s(sSw)}, 17, {s(sNB)}")
    k(f"s_lshl_b32 {s(sLg)}, {s(sG)}, 16")
    k(f"v_lshrrev_b32 {v(vT)}, 4, {v(vLane)}")
    k(f"s_and_b32 {s(sT)}, {s(sWV)}, 1")
    k(f"s_lshl_b32 {s(sT)}, {s(sT)}, 2")
    k(f"v_or_b32 {v(vT+1)}, {s(sT)}, {v(vT)}")
    k(f"v_bfe_u32 {v(vT+2)}, {v(vLane)}, 1, 3")
    k(f"v_xor_b32 {v(vT+1)}, {v(vT+1)}, {v(vT+2)}")
    k(f"v_lshlrev_b32 {v(vT)}, 13, {v(vT)}")
    k(f"v_lshl_add_u32 {v(vT)}, {v(vT+1)}, 5, {v(vT)}")
    k(f"v_and_b32 {v(vT+1)}, 1, {v(vLane)}")
    k(f"v_lshl_add_u32 {v(vWd)}, {v(vT+1)}, 4, {v(vT)}")
    k(f"v_add_u32 {v(vWd2)}, {32768-1024}, {v(vWd)}")
    k(f"s_lshl_b32 {s(sWo)}, {s(sWV)}, 16")
    k(f"s_lshl_b32 {s(sT)}, {s(sH)}, 8")
    k(f"s_add_u32 {s(sWo)}, {s(sWo)}, {s(sT)}")
    k(f"s_lshr_b32 {s(sXo)}, {s(sR0)}, 4")
    k(f"s_mul_i32 {s(sXo)}, {s(sXo)}, 18432")
    k(f"v_add_u32 {v(vD)}, 18432, {v(vL16)}")
    k(f"s_lshl_b32 {s(sKVb)}, {s(sH)}, 19")
    k(f"s_lshl_b32 {s(sT)}, {s(sW4)}, 12")
    k(f"s_add_u32 {s(sKVb)}, {s(sKVb)}, {s(sT)}")
    k(f"s_add_u32 {s(sLg)}, {s(sLg)}, {s(sT)}")
    k(f"s_lshl_b32 {s(sCo)}, {s(sWV)}, 11")
    k(f"s_waitcnt lgkmcnt(0)")
    srd(k, S_WQ, sQp, 0, 576 * 8192)
    srd(k, S_XN, sWS, WS_XNF, 2048 * 1152)

    CH = [16384, 32768, 49152, 81920, 98304, 114688, 131072, 147456, 16384]
    vm = []
    def vm_need(tags):
        idx = max((i for i, x in enumerate(vm) if x in tags), default=-1)
        if idx >= 0:
            k(f"s_waitcnt vmcnt({len(vm)-1-idx})")
            del vm[:idx + 1]
    def dma_wq(c):
        k(f"s_add_u32 m0, {s(sCo)}, {CH[c]}")
        k(f"buffer_load_dwordx4 {v(vWd)}, {s(S_WQ,4)}, {s(sWo)} offen lds")
        k(f"buffer_load_dwordx4 {v(vWd2)}, {s(S_WQ,4)}, {s(sWo)} offen offset:1024 lds")
        k(f"s_add_u32 {s(sWo)}, {s(sWo)}, {64*8192}")
        vm.extend([('wq', c)] * 2)
    def xr(ks, qb): return vQ + ((ks * 2 + qb) % 24) * 4
    def load_xn(c):
        for kk in range(2):
            ks = 2 * c + kk
            k(f"buffer_load_dwordx4 {v(xr(ks,0),4)}, {v(vL16)}, {s(S_XN,4)}, {s(sXo)} offen offset:{kk*1024}")
            k(f"buffer_load_dwordx4 {v(xr(ks,1),4)}, {v(vD)}, {s(S_XN,4)}, {s(sXo)} offen offset:{kk*1024}")
        k(f"s_add_u32 {s(sXo)}, {s(sXo)}, 2048")
        vm.extend([('xn', c)] * 4)
    def dma_piece(isv, slot, so, j):
        if j == 0: k(f"s_add_u32 m0, {s(sLg)}, {isv*32768 + slot*16384}")
        k(f"buffer_load_dwordx4 {v(vL16)}, {s(S_KV,4)}, {s(so)} offen offset:{1024*j} lds")
    def tile_off(dst, add, isv, limit):
        k(f"s_add_u32 {s(dst)}, {s(sIt)}, {add}")
        k(f"s_cmp_ge_u32 {s(dst)}, {s(sNBg)}")
        k(f"s_cselect_b32 {s(sT)}, {s(sSw)}, 0")
        k(f"s_add_u32 {s(sT)}, {s(dst)}, {s(sT)}")
        k(f"s_lshl_b32 {s(sT)}, {s(sT)}, 14")
        k(f"s_add_u32 {s(sT)}, {s(sT)}, {s(sKVb)}")
        if isv: k(f"s_add_u32 {s(sT)}, {s(sT)}, {WS_VT-WS_K}")
        k(f"s_cmp_gt_u32 {s(dst)}, {limit}")
        k(f"s_cselect_b32 {s(dst)}, 0x7f000000, {s(sT)}")

    PRE = 3
    for c in range(PRE):
        dma_wq(c); load_xn(c)
    srd(k, S_KV, sWS, WS_K, 32 * MB)
    srd(k, S_C, sWS, WS_CTX, 16 * MB)
    k(f"v_lshrrev_b32 {v(vT)}, 4, {v(vLane)}")
    k(f"v_bfe_u32 {v(vT+1)}, {v(vLane)}, 2, 2")
    k(f"v_lshl_add_u32 {v(vT+2)}, {v(vT)}, 3, {v(vT+1)}")
    k(f"v_and_b32 {v(vT)}, 1, {v(vT)}")
    k(f"v_lshl_or_b32 {v(vT)}, {v(vT)}, 2, {v(vT+1)}")
    k(f"v_lshlrev_b32 {v(vT+2)}, 8, {v(vT+2)}")
    k(f"v_and_b32 {v(vT+1)}, 3, {v(vLane)}")
    k(f"v_lshl_add_u32 {v(vT+2)}, {v(vT+1)}, 3, {v(vT+2)}")
    k(f"v_add_u32 {v(vT+2)}, {CH[0]}, {v(vT+2)}")
    for db in range(8):
        k(f"v_xor_b32 {v(vT+1)}, {db}, {v(vT)}")
        k(f"v_lshl_add_u32 {v(vKa+db)}, {v(vT+1)}, 5, {v(vT+2)}")
    for i in range(64):
        k(f"v_mov_b32 {v(vO+i)}, 0")
    k(f"s_mov_b32 {s(sIt)}, 0")
    pend = []
    def need(tag):
        if tag in pend:
            i = pend.index(tag)
            k(f"s_waitcnt lgkmcnt({min(15, len(pend)-1-i)})")
            del pend[:i + 1]
    def rd_wq(gi):
        kk, db = divmod(gi % 16, 8)
        b = vF + (gi % NBUF) * 4
        k(f"ds_read_b64_tr_b16 {v(b,2)}, {v(vKa+db)} offset:{kk*8192}")
        k(f"ds_read_b64_tr_b16 {v(b+2,2)}, {v(vKa+db)} offset:{kk*8192+1024}")
        pend.append(('w0', gi)); pend.append(('w', gi))
    vm_need([('wq', 0), ('xn', 0)])
    k("s_barrier")
    st_.stamp()
    for gi in range(LEAD): rd_wq(gi)
    for c in range(9):
        for gi in range(16 * c, 16 * c + 16):
            kk, db = divmod(gi % 16, 8)
            ks = 2 * c + kk
            if gi % 16 == 15 - LEAD and c < 8:
                vm_need([('wq', c + 1), ('xn', c + 1)])
                k("s_barrier")
                if 'prio' in exp: k("s_setprio 3")
            if 'prio' in exp and (gi - (15 - LEAD)) % 4 == 0 and gi % 16 != 15 - LEAD:
                k(f"s_setprio {3 - ((gi - (15 - LEAD)) % 16) // 4}")
            need(('w', gi))
            for qb in range(2):
                acc = v(vO + (db * 2 + qb) * 4, 4)
                k(f"{MF} {acc}, {v(vF+(gi%NBUF)*4,4)}, {v(xr(ks,qb),4)}, {acc}")
            if gi + LEAD < 144: rd_wq(gi + LEAD)
            g5 = (gi + LEAD) % 16
            if g5 >= 8 and (gi + LEAD) // 16 < 8:
                cc = (gi + LEAD) // 16
                k(f"v_add_u32 {v(vKa+g5-8)}, {(CH[cc+1]-CH[cc]) & 0xffffffff}, {v(vKa+g5-8)}")
            if gi % 16 == 11 and c + PRE < 9: dma_wq(c + PRE)
            if gi % 16 == 13 and c + PRE < 9: load_xn(c + PRE)
            if c == 6 and gi % 16 == 2: k(f"s_mov_b32 {s(sDk)}, {s(sKVb)}")
            if c == 6 and gi % 16 in (4, 6, 8, 12):
                dma_piece(0, 0, sDk, [4, 6, 8, 12].index(gi % 16)); vm.append(('k0',))
    st_.stamp()
    tile_off(sDk, 1, 0, 16)
    tile_off(sDv, 0, 1, 16)
    k(f"s_mov_b32 {s(sT)}, {f32(math.log2(math.e) / math.sqrt(128.0))}")
    k("s_barrier")
    n = 0
    for ds in range(4):
        for qb in range(2):
            for hh in range(2):
                o = vO + ((2 * ds + hh) * 2 + qb) * 4
                for j in range(4): k(f"v_mul_f32 {v(o+j)}, {s(sT)}, {v(o+j)}")
                k(f"v_cvt_pk_bf16_f32 {v(vQ+(ds*2+qb)*4+2*hh)}, {v(o)}, {v(o+1)}")
                k(f"v_cvt_pk_bf16_f32 {v(vQ+(ds*2+qb)*4+2*hh+1)}, {v(o+2)}, {v(o+3)}")
            dma_piece(n // 4, 1 - n // 4, sDk if n < 4 else sDv, n % 4); n += 1
    lq = k.newlabel("noq")
    k(f"s_lshl_b32 {s(sT)}, {s(sW4)}, 13")
    k(f"s_add_u32 {s(sT)}, {s(sT)}, {QA}")
    k(f"v_add_u32 {v(vT)}, {s(sT)}, {v(vL16)}")
    k(f"s_cmp_lg_u32 {s(sG)}, 0")
    k(f"s_cbranch_scc1 {lq}")
    for i in range(8):
        k(f"ds_write_b128 {v(vT)}, {v(vQ+4*i,4)} offset:{1024*i}")
    k.label(lq)
    k(f"v_and_b32 {v(vT)}, 15, {v(vLane)}")
    k(f"v_lshrrev_b32 {v(vT+1)}, 4, {v(vLane)}")
    k(f"s_lshl_b32 {s(sT)}, {s(sG)}, 16")
    k(f"v_xor_b32 {v(vT+2)}, {v(vT)}, {v(vT+1)}")
    k(f"v_lshlrev_b32 {v(vT+3)}, 8, {v(vT)}")
    k(f"v_add_u32 {v(vT+3)}, {s(sT)}, {v(vT+3)}")
    for ds in range(4):
        k(f"v_xor_b32 {v(vT+4)}, {4*ds}, {v(vT+2)}")
        k(f"v_lshl_add_u32 {v(vKa+ds)}, {v(vT+4)}, 4, {v(vT+3)}")
    k(f"v_and_b32 {v(vT+2)}, 7, {v(vT+2)}")
    k(f"v_lshlrev_b32 {v(vT+3)}, 7, {v(vT)}")
    k(f"v_add_u32 {v(vT+3)}, {s(sT)}, {v(vT+3)}")
    k(f"v_add_u32 {v(vT+3)}, 32768, {v(vT+3)}")
    for hb in range(2):
        k(f"v_xor_b32 {v(vT+4)}, {4*hb}, {v(vT+2)}")
        k(f"v_lshl_add_u32 {v(vVa+hb)}, {v(vT+4)}, 4, {v(vT+3)}")
    for ds in range(4):
        assert conflicts('b128', [(l % 16) * 256 + (((4 * ds + l // 16) ^ (l % 16)) * 16) for l in range(64)]) == 0
    for hb in range(2):
        assert conflicts('b128', [(l % 16) * 128 + (((4 * hb + l // 16) ^ (l % 8)) * 16) for l in range(64)]) == 0
    k(f"v_lshlrev_b32 {v(vT+1)}, 2, {v(vT+1)}")
    k(f"v_sub_u32 {v(vD)}, {v(vT)}, {v(vT+1)}")
    for i in range(72): k(f"v_mov_b32 {v(vO+i)}, 0")
    for i in range(8): k(f"v_mov_b32 {v(vN+i)}, 0")
    for i in range(4): k(f"v_mov_b32 {v(vOne+i)}, 0x3f803f80")
    for r in (vM, vM + 1): k(f"v_mov_b32 {v(r)}, 0")
    k(f"s_mov_b32 {s(sFirst)}, 1"); k(f"s_mov_b32 {s(sPend)}, 0"); k(f"s_mov_b32 {s(sK0)}, 0"); k(f"s_mov_b32 {s(sH3)}, 0")
    k(f"s_mov_b64 {s(sForce,2)}, -1")
    k("s_waitcnt vmcnt(8) lgkmcnt(0)")
    k("s_barrier")
    st_.stamp()

    ool = []
    def fbuf(step_par, itpar, f):
        pos = ((1 - itpar) * 2 + (1 - step_par)) * 16 + f
        return vF + (pos % NBUF) * 4
    def rd(step_par, itpar, f, do_qk, do_pv):
        hb = 0 if step_par else 1
        b = fbuf(step_par, itpar, f)
        if 'nolds' in exp: return
        if f < 8:
            if not do_qk: return
            ds, kb = divmod(f, 2)
            k(f"ds_read_b128 {v(b,4)}, {v(vKa+ds)} offset:{itpar*16384 + hb*8192 + kb*4096}")
        else:
            if not do_pv: return
            k(f"ds_read_b128 {v(b,4)}, {v(vVa+hb)} offset:{(1-itpar)*16384 + (f-8)*2048}")
        pend.append(('f', step_par, itpar, f))

    def xreduce(r, tmp, op):
        for sw_ in ("v_permlane16_swap_b32", "v_permlane32_swap_b32"):
            k(f"v_mov_b32 {v(tmp)}, {v(r)}")
            k(f"{sw_} {v(r)}, {v(tmp)}")
            k(f"{op} {v(r)}, {v(r)}, {v(tmp)}")

    def step(step_par, itpar, do_qk, do_sm, do_pv, sync, nxt, dma_carry=False):
        sw = vS + (0 if step_par else 16)
        sr = vS + (16 if step_par else 0)
        pw = vP + (8 if step_par else 0)
        pr = vP + (0 if step_par else 8)
        valu = []
        if do_sm:
            prev = None
            for qb in range(2):
                for kb in range(2):
                    for hh in range(2):
                        r0 = sr + (kb * 2 + qb) * 4 + 2 * hh
                        valu.append(f"v_exp_f32 {v(r0)}, {v(r0)}")
                        valu.append(f"v_exp_f32 {v(r0+1)}, {v(r0+1)}")
                        if prev: valu.extend(prev)
                        prev = [f"v_cvt_pk_bf16_f32 {v(pw+qb*4+kb*2+hh)}, {v(r0)}, {v(r0+1)}"]
            valu.extend(prev)
        if 'nosm' in exp: valu = []
        mx = []
        if do_qk:
            mx = [f"v_max3_f32 {v(vMax)}, {v(sw)}, {v(sw+1)}, {v(sw+2)}",
                  f"v_max3_f32 {v(vT)}, {v(sw+3)}, {v(sw+4)}, {v(sw+5)}",
                  f"v_max3_f32 {v(vMax)}, {v(vMax)}, {v(sw+6)}, {v(sw+7)}",
                  f"v_max3_f32 {v(vT)}, {v(vT)}, {v(sw+8)}, {v(sw+9)}",
                  f"v_max3_f32 {v(vMax)}, {v(vMax)}, {v(sw+10)}, {v(sw+11)}",
                  f"v_max3_f32 {v(vT)}, {v(vT)}, {v(sw+12)}, {v(sw+13)}",
                  f"v_max3_f32 {v(vMax)}, {v(vMax)}, {v(sw+14)}, {v(sw+15)}",
                  f"v_max_f32 {v(vMax)}, {v(vMax)}, {v(vT)}",
                  f"v_cmp_lt_f32 vcc, {f32(THR)}, {v(vMax)}"]
        SY = 11
        if sync:
            rs = {}
            nxt_f = LEAD
            for sl in range(16):
                lst = []
                lim = min(15, sl + NBUF - 1) if sl < SY else sl + LEAD
                cnt = 0
                while nxt_f <= lim and (nxt_f <= 15 or sl >= SY) and cnt < (2 if sl < SY else 99):
                    lst.append(nxt_f); nxt_f += 1; cnt += 1
                rs[sl] = lst
        else:
            rs = {sl: [sl + LEAD] for sl in range(16)}
        nval = len(valu)
        NSM = 23
        for sl in range(16):
            active = do_qk if sl < 8 else do_pv
            for qb in range(2):
                hs = 2 * sl + qb
                if active:
                    if qb == 0: need(('f', step_par, itpar, sl))
                    A_ = v(fbuf(step_par, itpar, sl), 4)
                    if sl < 8:
                        ds, kb = divmod(sl, 2)
                        D_ = v(sw + (kb * 2 + qb) * 4, 4)
                        C = v(vN + qb * 4, 4) if ds == 0 else D_
                        k(f"{MF} {D_}, {A_}, {v(vQ+(ds*2+qb)*4,4)}, {C}")
                    else:
                        acc = v(vO + ((sl - 8) * 2 + qb) * 4, 4)
                        k(f"{MF} {acc}, {A_}, {v(pr+qb*4,4)}, {acc}")
                        if sl == 11 + qb:
                            acc = v(vLa + qb * 4, 4)
                            k(f"{MF} {acc}, {v(vOne,4)}, {v(pr+qb*4,4)}, {acc}")
                if qb == 1:
                    if sync and sl == 9 and 'nosync' not in exp:
                        tile_off(sDk, 2, 0, 16)
                    if sync and sl == 10 and 'nosync' not in exp:
                        tile_off(sDv, 1, 1, 16)
                    if sync and sl == 11 and 'nosync' not in exp:
                        if 'inl' in exp and do_pv: k(f"s_memtime {s(84+8*itpar,2)}")
                        k("s_waitcnt vmcnt(0) lgkmcnt(0)")
                        if 'inl' in exp and do_pv: k(f"s_memtime {s(86+8*itpar,2)}")
                        pend.clear()
                        k("s_barrier")
                        if 'inl' in exp and do_pv: k(f"s_memtime {s(88+8*itpar,2)}")
                        if 'prio' in exp: k("s_setprio 3")
                    for f in rs.get(sl, []):
                        if f < 16: rd(step_par, itpar, f, do_qk, do_pv)
                        elif nxt: rd(nxt[0], nxt[1], f - 16, nxt[2], nxt[3])
                    if 'prio' in exp and sl in (3, 11) and not (sync and sl == 11):
                        k(f"s_setprio {(2 if sl == 3 else 1) if step_par else 0}")
                    if sl == 8 and do_qk:
                        k(f"s_cmp_eq_u32 {s(sK0)}, {s(sR0)}")
                        k(f"s_cselect_b64 {s(sMask,2)}, -1, {s(sForce,2)}")
                        if step_par == 0:
                            k(f"s_add_u32 {s(sT)}, {s(sIt)}, 1")
                            k(f"s_cmp_eq_u32 {s(sT)}, {s(sNBg)}")
                            k(f"s_cselect_b64 {s(sMask,2)}, -1, {s(sMask,2)}")
                else:
                    if sync and sl >= 12 and 'nosync' not in exp: dma_piece(0, itpar, sDk, sl - 12)
                    if dma_carry and sl < 4 and 'nosync' not in exp: dma_piece(1, itpar, sDv, sl)
                if hs < NSM:
                    for x in valu[nval * hs // NSM: nval * (hs + 1) // NSM]: k(x)
                elif mx:
                    i0 = hs - NSM
                    for x in mx[i0:i0 + 1]: k(x)
        if 'inl' in exp and step_par == 1 and do_qk and do_pv: k(f"s_memtime {s(90+8*itpar,2)}")
        if 'noend' in exp:
            if step_par == 0 and do_qk: k(f"s_add_u32 {s(sIt)}, {s(sIt)}, 1")
            return
        ls, lsr = k.newlabel("slow"), k.newlabel("slowret")
        if do_qk:
            k(f"s_add_u32 {s(sK0)}, {s(sK0)}, 32")
            if step_par == 0: k(f"s_add_u32 {s(sIt)}, {s(sIt)}, 1")
            k(f"s_or_b64 {s(sTmp2,2)}, vcc, {s(sMask,2)}")
        else:
            k(f"s_or_b64 {s(sTmp2,2)}, {s(sForce,2)}, {s(sForce,2)}")
        k(f"s_cbranch_scc1 {ls}")
        k.label(lsr)
        def f_slow():
            k.label(ls)
            k("s_nop 7")
            k(f"s_mov_b64 {s(sForce,2)}, 0")
            l1 = k.newlabel("np")
            k(f"s_cmp_eq_u32 {s(sPend)}, 0")
            k(f"s_cbranch_scc1 {l1}")
            for i in range(72): k(f"v_mul_f32 {v(vO+i)}, {v(vO+i)}, {v(vAl+(i//4)%2)}")
            k(f"s_mov_b32 {s(sPend)}, 0")
            k.label(l1)
            if step_par == 1 and do_sm:
                l2 = k.newlabel("nh2")
                k(f"s_cmp_lg_u32 {s(sIt)}, {s(sNBg)}")
                k(f"s_cbranch_scc1 {l2}")
                k(f"s_mov_b32 {s(sH3)}, 1")
                k(f"s_mov_b64 {s(sForce,2)}, -1")
                k.label(l2)
            if step_par == 0 and do_pv:
                l3 = k.newlabel("nh3")
                k(f"s_cmp_eq_u32 {s(sH3)}, 0")
                k(f"s_cbranch_scc1 {l3}")
                k(f"s_mov_b32 {s(sH3)}, 0")
                for qb in range(2):
                    k(f"v_rcp_f32 {v(vLB+qb)}, {v(vLa+qb*4)}")
                k(f"s_lshl_b32 {s(sT)}, {s(sP)}, 7")
                k(f"s_lshl_b32 {s(sT2)}, {s(sW4)}, 5")
                k(f"s_add_u32 {s(sT)}, {s(sT)}, {s(sT2)}")
                store_ctx(sT, range(4), vLB)
                for i in range(72): k(f"v_mov_b32 {v(vO+i)}, 0")
                k.label(l3)
            if do_qk:
                l4 = k.newlabel("nm")
                k(f"s_sub_u32 {s(sT)}, {s(sK0)}, 32")
                k(f"s_cmp_lt_u32 {s(sT)}, {s(sR0)}")
                k(f"s_cbranch_scc1 {l4}")
                k(f"s_cmp_eq_u32 {s(sT)}, {s(sR0)}")
                k(f"s_cselect_b64 vcc, -1, 0")
                k(f"v_mov_b32 {v(vT+1)}, -64")
                k(f"v_mov_b32 {v(vT+2)}, 0xff800000")
                k(f"v_cndmask_b32 {v(vT+1)}, {v(vT+1)}, {v(vD)}, vcc")
                for kb in range(2):
                    for qb in range(2):
                        for j in range(4):
                            k(f"v_cmp_gt_i32 vcc, {16*(kb-qb)+j}, {v(vT+1)}")
                            k(f"v_cndmask_b32 {v(sw+(kb*2+qb)*4+j)}, {v(sw+(kb*2+qb)*4+j)}, {v(vT+2)}, vcc")
                k.label(l4)
                for qb in range(2):
                    a0, a1 = sw + qb * 4, sw + (2 + qb) * 4
                    k(f"v_max3_f32 {v(vT+3+qb)}, {v(a0)}, {v(a0+1)}, {v(a0+2)}")
                    k(f"v_max3_f32 {v(vT+3+qb)}, {v(vT+3+qb)}, {v(a0+3)}, {v(a1)}")
                    k(f"v_max3_f32 {v(vT+3+qb)}, {v(vT+3+qb)}, {v(a1+1)}, {v(a1+2)}")
                    k(f"v_max_f32 {v(vT+3+qb)}, {v(vT+3+qb)}, {v(a1+3)}")
                k(f"v_max_f32 {v(vMax)}, {v(vT+3)}, {v(vT+4)}")
                k(f"v_cmp_lt_f32 vcc, {f32(THR)}, {v(vMax)}")
                l5, lf, lj, lr = k.newlabel("nr"), k.newlabel("first"), k.newlabel("join"), k.newlabel("resc")
                k(f"s_cmp_lg_u32 {s(sFirst)}, 0")
                k(f"s_cbranch_scc1 {lr}")
                k(f"s_cbranch_vccz {l5}")
                k.label(lr)
                for qb in range(2): xreduce(vT + 3 + qb, vT + 1, "v_max_f32")
                k(f"s_cmp_lg_u32 {s(sFirst)}, 0")
                k(f"s_cbranch_scc1 {lf}")
                for qb in range(2):
                    k(f"v_max_f32 {v(vT+3+qb)}, 0, {v(vT+3+qb)}")
                    k(f"v_sub_f32 {v(vAl+qb)}, 0, {v(vT+3+qb)}")
                    k(f"v_exp_f32 {v(vAl+qb)}, {v(vAl+qb)}")
                k(f"s_mov_b32 {s(sPend)}, 1")
                k(f"s_mov_b64 {s(sForce,2)}, -1")
                k(f"s_branch {lj}")
                k.label(lf)
                k(f"s_mov_b32 {s(sFirst)}, 0")
                for qb in range(2):
                    k(f"v_cmp_eq_f32 vcc, 0xff800000, {v(vT+3+qb)}")
                    k(f"v_cndmask_b32 {v(vT+3+qb)}, {v(vT+3+qb)}, 0, vcc")
                k.label(lj)
                for qb in range(2):
                    k(f"v_add_f32 {v(vM+qb)}, {v(vM+qb)}, {v(vT+3+qb)}")
                    for kb in range(2):
                        for j in range(4):
                            r = sw + (kb * 2 + qb) * 4 + j
                            k(f"v_sub_f32 {v(r)}, {v(r)}, {v(vT+3+qb)}")
                    for j in range(4): k(f"v_sub_f32 {v(vN+qb*4+j)}, 0, {v(vM+qb)}")
                k.label(l5)
                l7 = k.newlabel("ninf")
                k(f"s_cmp_le_u32 {s(sK0)}, {s(sR0)}")
                k(f"s_cbranch_scc1 {l7}")
                for r in range(8): k(f"v_mov_b32 {v(vN+r)}, 0xff800000")
                k.label(l7)
            if step_par == 0 and do_qk:
                l6 = k.newlabel("nh1")
                k(f"s_cmp_lg_u32 {s(sIt)}, {s(sNBg)}")
                k(f"s_cbranch_scc1 {l6}")
                k(f"s_lshl_b32 {s(sT)}, {s(sW4)}, 13")
                k(f"s_add_u32 {s(sT)}, {s(sT)}, {QA}")
                k(f"v_add_u32 {v(vT+1)}, {s(sT)}, {v(vL16)}")
                for i in range(8):
                    k(f"ds_read_b128 {v(vQ+4*i,4)}, {v(vT+1)} offset:{1024*i}")
                for r in range(8): k(f"v_mov_b32 {v(vN+r)}, 0")
                k(f"v_mov_b32 {v(vM)}, 0"); k(f"v_mov_b32 {v(vM+1)}, 0")
                k(f"s_mov_b32 {s(sFirst)}, 1")
                k(f"s_mov_b64 {s(sForce,2)}, -1")
                k(f"s_mov_b32 {s(sR0)}, {s(sRA)}")
                k(f"s_movk_i32 {s(sK0)}, {17*64}")
                k("s_waitcnt lgkmcnt(0)")
                k.label(l6)
            k("s_nop 1")
            k(f"s_branch {lsr}")
        ool.append(f_slow)

    def store_ctx(row_sgpr, dss, vscale):
        k(f"s_lshl_b32 {s(sCo)}, {s(row_sgpr)}, 13")
        k(f"s_lshl_b32 {s(sT2)}, {s(sH)}, 12")
        k(f"s_add_u32 {s(sCo)}, {s(sCo)}, {s(sT2)}")
        k(f"s_add_u32 {s(sT2)}, {s(sCo)}, {128*1024}")
        for ds in dss:
            for qb in range(2):
                o0, o1 = vO + ((2 * ds) * 2 + qb) * 4, vO + ((2 * ds + 1) * 2 + qb) * 4
                for j in range(4):
                    k(f"v_mul_f32 {v(o0+j)}, {v(o0+j)}, {v(vscale+qb)}")
                    k(f"v_mul_f32 {v(o1+j)}, {v(o1+j)}, {v(vscale+qb)}")
                k(f"v_cvt_pk_bf16_f32 {v(o0)}, {v(o0)}, {v(o0+1)}")
                k(f"v_cvt_pk_bf16_f32 {v(o0+1)}, {v(o0+2)}, {v(o0+3)}")
                k(f"v_cvt_pk_bf16_f32 {v(o0+2)}, {v(o1)}, {v(o1+1)}")
                k(f"v_cvt_pk_bf16_f32 {v(o0+3)}, {v(o1+2)}, {v(o1+3)}")
                k(f"buffer_store_dwordx4 {v(o0,4)}, {v(vL16)}, {s(S_C,4)}, {s(sCo if qb == 0 else sT2)} offen offset:{ds*1024}")

    for f in range(LEAD): rd(1, 0, f, True, False)
    step(1, 0, True, False, False, False, (0, 0, True, False))
    step(0, 0, True, True, False, True, (1, 1, True, True))
    loop = k.newlabel("loop")
    pend_at_loop = list(pend)
    k.label(loop)
    for itpar in (1, 0):
        step(1, itpar, True, True, True, False, (0, itpar, True, True), dma_carry=True)
        step(0, itpar, True, True, True, True, (1, 1 - itpar, True, True))
    assert pend == pend_at_loop or 'nosync' in exp, (pend, pend_at_loop)
    k(f"s_cmp_lt_u32 {s(sIt)}, 17")
    k(f"s_cbranch_scc1 {loop}")
    k.check_loop(loop)
    k("s_waitcnt lgkmcnt(0)"); pend.clear()
    step(1, 1, False, True, True, False, (0, 1, False, True))
    step(0, 1, False, False, True, False, None)
    st_.stamp()
    k("s_waitcnt vmcnt(0)")
    k("s_barrier")
    for qb in range(2):
        k(f"v_mov_b32 {v(vL+qb)}, {v(vLa+qb*4)}")
        k(f"v_cmp_eq_f32 vcc, 0, {v(vL+qb)}")
        k(f"v_mov_b32 {v(vT+1)}, {f32(-1e30)}")
        k(f"v_cndmask_b32 {v(vLB+qb)}, {v(vM+qb)}, {v(vT+1)}, vcc")
    k(f"s_mul_i32 {s(sT)}, {s(sWV)}, 9216")
    k(f"v_add_u32 {v(vT)}, {s(sT)}, {v(vL16)}")
    k(f"s_xor_b32 {s(sT2)}, {s(sWV)}, 4")
    k(f"s_mul_i32 {s(sT2)}, {s(sT2)}, 9216")
    k(f"v_add_u32 {v(vT+1)}, {s(sT2)}, {v(vL16)}")
    k(f"ds_write_b128 {v(vT)}, {v(vL,4)} offset:8192")
    lg1, lgj = k.newlabel("mg1"), k.newlabel("mgj")
    k(f"s_cmp_lg_u32 {s(sG)}, 0")
    k(f"s_cbranch_scc1 {lg1}")
    def merge(own, other):
        for i in range(8):
            k(f"ds_write_b128 {v(vT)}, {v(vO+other*32+4*i,4)} offset:{1024*i}")
        k("s_waitcnt lgkmcnt(0)")
        k("s_barrier")
        X = vP
        k(f"ds_read_b128 {v(X,4)}, {v(vT+1)} offset:8192")
        for i in range(8):
            k(f"ds_read_b128 {v(vS+4*i,4)}, {v(vT+1)} offset:{1024*i}")
        k("s_waitcnt lgkmcnt(8)")
        for qb in range(2):
            k(f"v_max_f32 {v(vM+qb)}, {v(vLB+qb)}, {v(X+2+qb)}")
            k(f"v_sub_f32 {v(vLB+qb)}, {v(vLB+qb)}, {v(vM+qb)}")
            k(f"v_sub_f32 {v(X+2+qb)}, {v(X+2+qb)}, {v(vM+qb)}")
            k(f"v_exp_f32 {v(vLB+qb)}, {v(vLB+qb)}")
            k(f"v_exp_f32 {v(X+2+qb)}, {v(X+2+qb)}")
            k(f"v_mul_f32 {v(vL+qb)}, {v(vL+qb)}, {v(vLB+qb)}")
            k(f"v_fmac_f32 {v(vL+qb)}, {v(X+qb)}, {v(X+2+qb)}")
            k(f"v_rcp_f32 {v(vL+qb)}, {v(vL+qb)}")
        k("s_waitcnt lgkmcnt(0)")
        for i in range(32):
            qb = (i // 4) % 2
            k(f"v_mul_f32 {v(vO+own*32+i)}, {v(vO+own*32+i)}, {v(vLB+qb)}")
            k(f"v_fmac_f32 {v(vO+own*32+i)}, {v(vS+i)}, {v(X+2+qb)}")
        store_ctx(sRA, (2 * own, 2 * own + 1), vL)
    merge(0, 1)
    k(f"s_branch {lgj}")
    k.label(lg1)
    merge(1, 0)
    k.label(lgj)
    st_.stamp()
    st_.dump(sWS, sWV, 200 * MB, vT, srd_base=60, extra=list(range(84, 100, 2)) if 'inl' in exp else ())
    k.label(done)
    k("s_endpgm")
    for f in ool: f()
    return k, nv, 163840, 0
```

```python
from asmlib import *
from layout import *
from k_sg2 import srd

def gen_ffnup(name, exp=''):
    k = Kernel(name)
    NKS = 18
    NSL = 4
    STG = 34 * 1024
    S_X, S_W, S_A, S_C = 8, 12, 16, 20
    sWS = 24
    sMB, sFT, sWV, sRG, sCG, sT, sT2, sXo, sWo, sWq, sL0, sLq, sAo, sAo2 = range(26, 40)
    vLane, vL16, vL4, vXr, vWr, vT = 1, 2, 3, 4, 5, 6
    vPr = 12
    vCS = 28
    vX = 64
    vW = 96
    vE = 64
    done = k.newlabel("done")
    k(f"s_cmp_ge_u32 s2, 256")
    k(f"s_cbranch_scc1 {done}")
    st_ = Stamps(k, 'stamp' in exp)
    st_.stamp(True)
    st_.stamp()
    k(f"s_load_dwordx2 {s(sWS,2)}, s[0:1], 96")
    k(f"v_lshrrev_b32 {v(vT)}, 6, v0")
    k(f"v_and_b32 {v(vLane)}, 63, v0")
    k(f"v_readfirstlane_b32 {s(sWV)}, {v(vT)}")
    k(f"s_and_b32 {s(sFT)}, s2, 7")
    k(f"s_lshl_b32 {s(sFT)}, {s(sFT)}, 2")
    k(f"s_lshr_b32 {s(sT)}, s2, 3")
    k(f"s_and_b32 {s(sT2)}, {s(sT)}, 3")
    k(f"s_add_u32 {s(sFT)}, {s(sFT)}, {s(sT2)}")
    k(f"s_lshr_b32 {s(sMB)}, {s(sT)}, 2")
    k(f"s_and_b32 {s(sRG)}, {s(sWV)}, 3")
    k(f"s_lshr_b32 {s(sCG)}, {s(sWV)}, 2")
    k(f"v_lshlrev_b32 {v(vL16)}, 4, {v(vLane)}")
    k(f"v_lshlrev_b32 {v(vL4)}, 2, {v(vLane)}")
    k(f"s_lshl_b32 {s(sT)}, {s(sRG)}, 12")
    k(f"v_add_u32 {v(vXr)}, {s(sT)}, {v(vL16)}")
    k(f"s_mul_i32 {s(sT)}, {s(sCG)}, 9216")
    k(f"s_add_u32 {s(sT)}, {s(sT)}, 16384")
    k(f"v_add_u32 {v(vWr)}, {s(sT)}, {v(vL16)}")
    k(f"s_lshl_b32 {s(sXo)}, {s(sMB)}, 4")
    k(f"s_lshl_b32 {s(sT)}, {s(sWV)}, 1")
    k(f"s_add_u32 {s(sXo)}, {s(sXo)}, {s(sT)}")
    k(f"s_mul_i32 {s(sXo)}, {s(sXo)}, 18432")
    k(f"s_mul_i32 {s(sWo)}, {s(sFT)}, 18")
    k(f"s_add_u32 {s(sWq)}, {s(sWo)}, 16")
    k(f"s_add_u32 {s(sWo)}, {s(sWo)}, {s(sT)}")
    k(f"s_mul_i32 {s(sWo)}, {s(sWo)}, 18432")
    k(f"s_add_u32 {s(sWq)}, {s(sWq)}, {s(sCG)}")
    k(f"s_mul_i32 {s(sWq)}, {s(sWq)}, 18432")
    k(f"s_lshl_b32 {s(sT2)}, {s(sRG)}, 8")
    k(f"s_add_u32 {s(sWq)}, {s(sWq)}, {s(sT2)}")
    k(f"s_lshl_b32 {s(sL0)}, {s(sWV)}, 11")
    k(f"s_lshl_b32 {s(sLq)}, {s(sWV)}, 8")
    k(f"s_add_u32 {s(sLq)}, {s(sLq)}, {32*1024}")
    k(f"v_add_u32 {v(vT)}, {18432-1024}, {v(vL16)}")
    vD2 = vT
    k(f"s_waitcnt lgkmcnt(0)")
    srd(k, S_X, sWS, WS_HF, 128 * 18432)
    srd(k, S_W, sWS, WS_WGU, 576 * 18432)
    srd(k, S_A, sWS, WS_ACT, 128 * 144 * 1024)
    srd(k, S_C, sWS, WS_STAT, WS_CS - WS_STAT + 576 * 64)

    def dma(st):
        sl = st % NSL
        k(f"s_add_u32 m0, {s(sL0)}, {sl*STG}")
        k(f"buffer_load_dwordx4 {v(vL16)}, {s(S_X,4)}, {s(sXo)} offen lds")
        k(f"buffer_load_dwordx4 {v(vD2)}, {s(S_X,4)}, {s(sXo)} offen offset:1024 lds")
        k(f"s_add_u32 m0, {s(sL0)}, {sl*STG+16384}")
        k(f"s_add_u32 {s(sXo)}, {s(sXo)}, 1024")
        k(f"buffer_load_dwordx4 {v(vL16)}, {s(S_W,4)}, {s(sWo)} offen lds")
        k(f"buffer_load_dwordx4 {v(vD2)}, {s(S_W,4)}, {s(sWo)} offen offset:1024 lds")
        k(f"s_add_u32 m0, {s(sLq)}, {sl*STG}")
        k(f"s_add_u32 {s(sWo)}, {s(sWo)}, 1024")
        k(f"buffer_load_dword {v(vL4)}, {s(S_W,4)}, {s(sWq)} offen lds")
        k(f"s_add_u32 {s(sWq)}, {s(sWq)}, 1024")

    for st in range(3):
        dma(st)
    k(f"v_and_b32 {v(vT+1)}, 15, {v(vLane)}")
    k(f"v_lshlrev_b32 {v(vT+1)}, 6, {v(vT+1)}")
    k(f"v_lshrrev_b32 {v(vT+2)}, 4, {v(vLane)}")
    k(f"v_lshlrev_b32 {v(vT+2)}, 4, {v(vT+2)}")
    k(f"v_add_u32 {v(vT+1)}, {v(vT+1)}, {v(vT+2)}")
    k(f"s_lshl_b32 {s(sT)}, {s(sMB)}, 14")
    k(f"s_lshl_b32 {s(sT2)}, {s(sRG)}, 12")
    k(f"s_add_u32 {s(sT)}, {s(sT)}, {s(sT2)}")
    vS = 64
    for rb in range(4):
        k(f"buffer_load_dwordx4 {v(vS+rb*8,4)}, {v(vT+1)}, {s(S_C,4)}, {s(sT)} offen offset:{rb*1024}")
    k(f"s_mul_i32 {s(sT)}, {s(sFT)}, 18")
    k(f"s_mul_i32 {s(sT2)}, {s(sCG)}, 9")
    k(f"s_add_u32 {s(sT)}, {s(sT)}, {s(sT2)}")
    k(f"s_lshl_b32 {s(sT)}, {s(sT)}, 6")
    k(f"s_add_u32 {s(sT)}, {s(sT)}, {WS_CS-WS_STAT}")
    for b in range(9):
        k(f"buffer_load_dwordx4 {v(vCS+b*4,4)}, {v(vT+2)}, {s(S_C,4)}, {s(sT)} offen offset:{b*64}")
    for i in range(144):
        k(f"v_accvgpr_write_b32 {a(i)}, 0")
    k(f"s_lshl_b32 {s(sAo)}, {s(sMB)}, 4")
    k(f"s_lshl_b32 {s(sT)}, {s(sRG)}, 2")
    k(f"s_add_u32 {s(sAo)}, {s(sAo)}, {s(sT)}")
    k(f"s_mul_i32 {s(sAo)}, {s(sAo)}, 144")
    k(f"s_lshl_b32 {s(sT)}, {s(sFT)}, 1")
    k(f"s_add_u32 {s(sT)}, {s(sT)}, {s(sCG)}")
    k(f"s_lshr_b32 {s(sAo2)}, {s(sT)}, 2")
    k(f"s_add_u32 {s(sAo2)}, {s(sAo2)}, 128")
    k(f"s_add_u32 {s(sAo2)}, {s(sAo2)}, {s(sAo)}")
    k(f"s_lshl_b32 {s(sAo2)}, {s(sAo2)}, 10")
    k(f"s_and_b32 {s(sT2)}, {s(sT)}, 3")
    k(f"s_lshl_b32 {s(sT2)}, {s(sT2)}, 2")
    k(f"s_add_u32 {s(sAo2)}, {s(sAo2)}, {s(sT2)}")
    k(f"s_lshl_b32 {s(sT)}, {s(sT)}, 1")
    k(f"s_add_u32 {s(sAo)}, {s(sAo)}, {s(sT)}")
    k(f"s_lshl_b32 {s(sAo)}, {s(sAo)}, 10")
    k(f"s_waitcnt vmcnt(9)")
    k(f"s_mov_b32 {s(sT)}, 0x3ae38e39")
    k(f"s_mov_b32 {s(sT2)}, 0xbfb8aa3b")
    for rb in range(4):
        b = vS + rb * 8
        k(f"v_add_f32 {v(b)}, {v(b)}, {v(b+2)}")
        k(f"v_add_f32 {v(b+1)}, {v(b+1)}, {v(b+3)}")
        for sw in ("v_permlane16_swap_b32", "v_permlane32_swap_b32"):
            k(f"v_mov_b32 {v(b+2)}, {v(b)}")
            k(f"v_mov_b32 {v(b+3)}, {v(b+1)}")
            k(f"{sw} {v(b)}, {v(b+2)}")
            k(f"{sw} {v(b+1)}, {v(b+3)}")
            k(f"v_add_f32 {v(b)}, {v(b)}, {v(b+2)}")
            k(f"v_add_f32 {v(b+1)}, {v(b+1)}, {v(b+3)}")
        k(f"v_mul_f32 {v(b)}, {s(sT)}, {v(b)}")
        k(f"v_mul_f32 {v(b+1)}, {s(sT)}, {v(b+1)}")
        k(f"v_fma_f32 {v(b+1)}, -{v(b)}, {v(b)}, {v(b+1)}")
        k(f"v_max_f32 {v(b+1)}, 0, {v(b+1)}")
        k(f"v_add_f32 {v(b+1)}, 0x3727c5ac, {v(b+1)}")
        k(f"v_rcp_f32 {v(vPr+4*rb+1)}, {v(b+1)}")
        k(f"v_rsq_f32 {v(b+2)}, {v(b+1)}")
        k(f"v_sub_f32 {v(vPr+4*rb)}, 0, {v(b)}")
        k(f"v_mov_b32 {v(vPr+4*rb+3)}, 1.0")
        k(f"v_mul_f32 {v(vPr+4*rb+2)}, {s(sT2)}, {v(b+2)}")
    k("s_barrier")
    st_.stamp()
    k("s_waitcnt lgkmcnt(0)")
    def rdX(st, rb):
        k(f"ds_read_b128 {v(vX+(st%2)*16+rb*4,4)}, {v(vXr)} offset:{(st%NSL)*STG % 65536 + rb*1024}") if (st % NSL) * STG + 16384 < 65536 else None
    vXr2, vWr2 = vT + 3, vT + 4
    k(f"v_add_u32 {v(vXr2)}, {2*STG}, {v(vXr)}")
    k(f"v_add_u32 {v(vWr2)}, {2*STG}, {v(vWr)}")
    def rdx(st, rb):
        sl = st % NSL
        base = vXr if sl < 2 else vXr2
        k(f"ds_read_b128 {v(vX+(st%2)*16+rb*4,4)}, {v(base)} offset:{(sl%2)*STG + rb*1024}")
    def rdw(gidx):
        st, cb = divmod(gidx, 9)
        if st >= NKS: return False
        sl = st % NSL
        base = vWr if sl < 2 else vWr2
        k(f"ds_read_b128 {v(vW+(gidx%4)*4,4)}, {v(base)} offset:{(sl%2)*STG + cb*1024}")
        return True
    pend = []
    def issue_x(st, rb): rdx(st, rb); pend.append(('x', st, rb))
    def issue_w(g):
        if rdw(g): pend.append(('w', g))
    def need(tag):
        if tag in pend:
            i = pend.index(tag)
            n = len(pend) - 1 - i
            k(f"s_waitcnt lgkmcnt({n})")
            del pend[:i + 1]
    for rb in range(4): issue_x(0, rb)
    issue_w(0); issue_w(1); issue_w(2)
    SYNC_CB = 4
    for st in range(NKS):
        for cb in range(9):
            g = st * 9 + cb
            if cb == SYNC_CB and st + 1 < NKS:
                nfl = 5 if st + 2 < NKS else 0
                k(f"s_waitcnt vmcnt({nfl})")
                k("s_barrier")
                if st + 3 < NKS: dma(st + 3)
            need(('w', g))
            for rb in range(4):
                if cb == 0: need(('x', st, rb))
                acc = a((cb * 4 + rb) * 4, 4)
                k(f"v_mfma_f32_16x16x32_bf16 {acc}, {v(vW+(g%4)*4,4)}, {v(vX+(st%2)*16+rb*4,4)}, {acc}")
                if rb == 0: issue_w(g + 3)
                if cb > SYNC_CB and cb - SYNC_CB - 1 < 4 and rb == 2 and st + 1 < NKS:
                    issue_x(st + 1, cb - SYNC_CB - 1)
    st_.stamp()
    LO = "op_sel:[0,0,0] op_sel_hi:[0,1,1]"
    for rb in range(4):
        P0, P1 = v(vPr+4*rb, 2), v(vPr+4*rb+2, 2)
        for b in range(9):
            t = vE + (b % 3) * 8
            A0 = (b * 4 + rb) * 4
            for r in range(4):
                k(f"v_accvgpr_read_b32 {v(t+r)}, {a(A0+r)}")
            k(f"v_pk_fma_f32 {v(t,2)}, {P0}, {v(vCS+b*4,2)}, {v(t,2)} op_sel:[0,0,0] op_sel_hi:[0,1,1]")
            k(f"v_pk_fma_f32 {v(t+2,2)}, {P0}, {v(vCS+b*4+2,2)}, {v(t+2,2)} op_sel:[0,0,0] op_sel_hi:[0,1,1]")
            k(f"v_pk_mul_f32 {v(t+4,2)}, {P1}, {v(t,2)} op_sel:[0,0] op_sel_hi:[0,1]")
            k(f"v_exp_f32 {v(t+4)}, {v(t+4)}")
            k(f"v_exp_f32 {v(t+5)}, {v(t+5)}")
            k(f"v_pk_mul_f32 {v(t,2)}, {v(t,2)}, {v(t+2,2)}")
            k(f"v_pk_add_f32 {v(t+4,2)}, {P1}, {v(t+4,2)} op_sel:[1,0] op_sel_hi:[1,1]")
            k(f"v_rcp_f32 {v(t+4)}, {v(t+4)}")
            k(f"v_rcp_f32 {v(t+5)}, {v(t+5)}")
            k(f"v_pk_mul_f32 {v(t,2)}, {P0}, {v(t,2)} op_sel:[1,0] op_sel_hi:[1,1]")
            k(f"v_pk_mul_f32 {v(t,2)}, {v(t,2)}, {v(t+4,2)}")
            ob = vE + 24 + (rb % 2) * 12 + b
            k(f"v_cvt_pk_bf16_f32 {v(ob)}, {v(t)}, {v(t+1)}")
            if b == 3 or b == 7:
                k(f"buffer_store_dwordx4 {v(ob-3,4)}, {v(vL16)}, {s(S_A,4)}, {s(sAo)} offen offset:{1024*(b//4)}")
            if b == 8:
                k(f"buffer_store_dword {v(ob)}, {v(vL16)}, {s(S_A,4)}, {s(sAo2)} offen")
        if rb < 3:
            k(f"s_add_u32 {s(sAo)}, {s(sAo)}, {144*1024}")
            k(f"s_add_u32 {s(sAo2)}, {s(sAo2)}, {144*1024}")
    st_.stamp()
    st_.dump(sWS, sWV, 200 * MB, vT)
    k.label(done)
    k("s_endpgm")
    return k, 112, NSL * STG, 144
```

```python
from asmlib import *
from layout import *
from k_sg2 import srd

def gen_kv(name, exp=''):
    k = Kernel(name)
    NT = 16
    XSL, WSL = 32768, 16384
    WBASE = 3 * XSL
    S_X, S_WK, S_WV, S_O, S_W, S_XI = 8, 12, 16, 20, 24, 28
    sWS, sCp, sKp, sVp, sXp = 32, 34, 36, 38, 40
    sMB, sH, sWV, sRG, sCG, sT, sT2, sXo, sWo, sLx, sLw, sOo = range(42, 54)
    vLane, vXd, vXd2, vWd, vWd2, vXr0, vXr1, vT = 1, 2, 3, 4, 5, 6, 7, 8
    vWa = 16
    vWf = 20
    vXf = 52
    vAcc = 68
    nv = 196
    st_ = Stamps(k, 'stamp' in exp)
    done = k.newlabel("done")
    k(f"s_cmp_ge_u32 s2, 256")
    k(f"s_cbranch_scc1 {done}")
    st_.stamp(True); st_.stamp()
    k(f"s_load_dwordx2 {s(sWS,2)}, s[0:1], 96")
    k(f"s_load_dwordx2 {s(sCp,2)}, s[0:1], 8")
    k(f"s_load_dwordx2 {s(sKp,2)}, s[0:1], 24")
    k(f"s_load_dwordx2 {s(sVp,2)}, s[0:1], 32")
    k(f"s_load_dwordx2 {s(sXp,2)}, s[0:1], 0")
    k(f"v_lshrrev_b32 {v(vT)}, 6, v0")
    k(f"v_and_b32 {v(vLane)}, 63, v0")
    k(f"v_readfirstlane_b32 {s(sWV)}, {v(vT)}")
    k(f"s_and_b32 {s(sMB)}, s2, 1")
    k(f"s_lshl_b32 {s(sMB)}, {s(sMB)}, 2")
    k(f"s_lshr_b32 {s(sT)}, s2, 3")
    k(f"s_and_b32 {s(sT2)}, {s(sT)}, 3")
    k(f"s_add_u32 {s(sMB)}, {s(sMB)}, {s(sT2)}")
    k(f"s_bfe_u32 {s(sH)}, s2, 0x20001")
    k(f"s_lshl_b32 {s(sH)}, {s(sH)}, 3")
    k(f"s_lshr_b32 {s(sT)}, {s(sT)}, 2")
    k(f"s_add_u32 {s(sH)}, {s(sH)}, {s(sT)}")
    k(f"s_and_b32 {s(sRG)}, {s(sWV)}, 1")
    k(f"s_lshr_b32 {s(sCG)}, {s(sWV)}, 1")
    k(f"v_lshrrev_b32 {v(vT)}, 3, {v(vLane)}")
    k(f"v_and_b32 {v(vT+1)}, 7, {v(vLane)}")
    k(f"v_xor_b32 {v(vT+1)}, {v(vT+1)}, {v(vT)}")
    k(f"v_lshlrev_b32 {v(vT)}, 10, {v(vT)}")
    k(f"v_lshl_add_u32 {v(vXd)}, {v(vT+1)}, 4, {v(vT)}")
    k(f"v_add_u32 {v(vXd2)}, {8192-1024}, {v(vXd)}")
    k(f"s_lshl_b32 {s(sXo)}, {s(sMB)}, 18")
    k(f"s_lshl_b32 {s(sT)}, {s(sWV)}, 14")
    k(f"s_add_u32 {s(sXo)}, {s(sXo)}, {s(sT)}")
    k(f"s_lshl_b32 {s(sLx)}, {s(sWV)}, 11")
    k(f"v_lshrrev_b32 {v(vT)}, 4, {v(vLane)}")
    k(f"s_and_b32 {s(sT)}, {s(sWV)}, 1")
    k(f"s_lshl_b32 {s(sT)}, {s(sT)}, 2")
    k(f"v_or_b32 {v(vT+1)}, {s(sT)}, {v(vT)}")
    k(f"v_bfe_u32 {v(vT+2)}, {v(vLane)}, 1, 3")
    k(f"v_xor_b32 {v(vT+1)}, {v(vT+1)}, {v(vT+2)}")
    k(f"v_lshlrev_b32 {v(vT)}, 13, {v(vT)}")
    k(f"v_lshl_add_u32 {v(vT)}, {v(vT+1)}, 5, {v(vT)}")
    k(f"v_and_b32 {v(vT+1)}, 1, {v(vLane)}")
    k(f"v_lshl_add_u32 {v(vWd)}, {v(vT+1)}, 4, {v(vT)}")
    k(f"v_add_u32 {v(vWd2)}, {32768-1024}, {v(vWd)}")
    k(f"s_and_b32 {s(sWo)}, {s(sWV)}, 3")
    k(f"s_lshl_b32 {s(sWo)}, {s(sWo)}, 16")
    k(f"s_lshl_b32 {s(sT)}, {s(sH)}, 8")
    k(f"s_add_u32 {s(sWo)}, {s(sWo)}, {s(sT)}")
    k(f"s_add_u32 {s(sLw)}, {s(sLx)}, {WBASE}")
    k(f"s_waitcnt lgkmcnt(0)")
    srd(k, S_X, sCp, 0, 2048 * 1024)
    k(f"s_cmp_ge_u32 {s(sWV)}, 4")
    k(f"s_cselect_b32 {s(S_W)}, {s(sVp)}, {s(sKp)}")
    k(f"s_cselect_b32 {s(S_W+1)}, {s(sVp+1)}, {s(sKp+1)}")
    k(f"s_mov_b32 {s(S_W+2)}, {512*8192}")
    k(f"s_mov_b32 {s(S_W+3)}, 0x00020000")

    def dma_w(t):
        k(f"s_add_u32 m0, {s(sLw)}, {(t%4)*WSL}")
        k(f"buffer_load_dwordx4 {v(vWd)}, {s(S_W,4)}, {s(sWo)} offen lds")
        k(f"buffer_load_dwordx4 {v(vWd2)}, {s(S_W,4)}, {s(sWo)} offen offset:1024 lds")
        k(f"s_add_u32 {s(sWo)}, {s(sWo)}, {32*8192}")
    def dma_x(j, half):
        k(f"s_add_u32 m0, {s(sLx)}, {(j%3)*XSL + half*16384}")
        k(f"s_add_u32 {s(sT)}, {s(sXo)}, {half*128*1024 + j*128}")
        k(f"buffer_load_dwordx4 {v(vXd)}, {s(S_X,4)}, {s(sT)} offen lds")
        k(f"buffer_load_dwordx4 {v(vXd2)}, {s(S_X,4)}, {s(sT)} offen offset:1024 lds")
    vm = []
    def D_w(t): dma_w(t); vm.extend([('w', t)] * 2)
    def D_x(j, h): dma_x(j, h); vm.extend([('x', j, h)] * 2)
    def vm_need(tags):
        idx = max((i for i, x in enumerate(vm) if x in tags), default=-1)
        if idx >= 0:
            k(f"s_waitcnt vmcnt({len(vm)-1-idx})")
            del vm[:idx + 1]
    srd(k, S_XI, sXp, 0, 2048 * 1152)
    k(f"s_lshl_b32 {s(sT)}, s2, 3")
    k(f"s_add_u32 {s(sT)}, {s(sT)}, {s(sWV)}")
    k(f"s_mul_i32 {s(sT)}, {s(sT)}, 1152")
    k(f"v_lshlrev_b32 {v(vT)}, 4, {v(vLane)}")
    k(f"v_add_u32 {v(vT+1)}, 1024, {v(vT)}")
    k(f"v_cmp_gt_u32 vcc, 8, {v(vLane)}")
    k(f"v_mov_b32 {v(vT+2)}, 0x7f000000")
    k(f"v_cndmask_b32 {v(vT+1)}, {v(vT+2)}, {v(vT+1)}, vcc")
    k(f"buffer_load_dwordx4 {v(vAcc,4)}, {v(vT)}, {s(S_XI,4)}, {s(sT)} offen")
    k(f"buffer_load_dwordx4 {v(vAcc+4,4)}, {v(vT+1)}, {s(S_XI,4)}, {s(sT)} offen")
    vm.extend([('ln',)] * 2)
    D_x(0, 0); D_x(0, 1); D_w(0); D_w(1); D_x(1, 0); D_x(1, 1); D_w(2)
    srd(k, S_O, sWS, WS_K, 32 * MB)
    k(f"v_and_b32 {v(vT)}, 15, {v(vLane)}")
    k(f"v_lshrrev_b32 {v(vT+1)}, 4, {v(vLane)}")
    k(f"v_and_b32 {v(vT+2)}, 7, {v(vLane)}")
    k(f"v_xor_b32 {v(vT+1)}, {v(vT+1)}, {v(vT+2)}")
    k(f"v_lshlrev_b32 {v(vT)}, 7, {v(vT)}")
    k(f"v_lshl_add_u32 {v(vXr0)}, {v(vT+1)}, 4, {v(vT)}")
    k(f"s_lshl_b32 {s(sT)}, {s(sRG)}, 14")
    k(f"v_add_u32 {v(vXr0)}, {s(sT)}, {v(vXr0)}")
    k(f"v_xor_b32 {v(vXr1)}, 64, {v(vXr0)}")
    for isv in (0, 1):
        for tt in (0, 1):
            ad = []
            for l in range(64):
                m, g = l % 16, l // 16
                row = m
                ad.append(row * 128 + (((4 * tt + g) ^ (row & 7)) * 16))
            assert conflicts('b128', ad) == 0
    vXr2, vXr3 = vT + 6, vT + 7
    k(f"v_add_u32 {v(vXr2)}, {2*XSL}, {v(vXr0)}")
    k(f"v_add_u32 {v(vXr3)}, {2*XSL}, {v(vXr1)}")
    k(f"v_lshrrev_b32 {v(vT)}, 4, {v(vLane)}")
    k(f"v_bfe_u32 {v(vT+1)}, {v(vLane)}, 2, 2")
    k(f"v_lshl_add_u32 {v(vT+2)}, {v(vT)}, 3, {v(vT+1)}")
    k(f"v_and_b32 {v(vT)}, 1, {v(vT)}")
    k(f"v_lshl_or_b32 {v(vT)}, {v(vT)}, 2, {v(vT+1)}")
    k(f"s_and_b32 {s(sT)}, {s(sCG)}, 1")
    k(f"s_lshl_b32 {s(sT)}, {s(sT)}, 2")
    k(f"v_xor_b32 {v(vT)}, {s(sT)}, {v(vT)}")
    k(f"v_lshlrev_b32 {v(vT+2)}, 8, {v(vT+2)}")
    k(f"v_and_b32 {v(vT+1)}, 3, {v(vLane)}")
    k(f"v_lshl_add_u32 {v(vT+2)}, {v(vT+1)}, 3, {v(vT+2)}")
    k(f"s_lshr_b32 {s(sT)}, {s(sCG)}, 1")
    k(f"s_lshl_b32 {s(sT)}, {s(sT)}, 13")
    k(f"s_add_u32 {s(sT)}, {s(sT)}, {WBASE}")
    k(f"v_add_u32 {v(vT+2)}, {s(sT)}, {v(vT+2)}")
    for cb in range(4):
        k(f"v_xor_b32 {v(vT+1)}, {cb}, {v(vT)}")
        k(f"v_lshl_add_u32 {v(vWa+cb)}, {v(vT+1)}, 5, {v(vT+2)}")
    for seg in range(8):
        ad = []
        for l in range(64):
            g, r, c = l // 16, (l % 16) // 4, l % 4
            row = 8 * g + r
            f = r | ((g & 1) << 2)
            ad.append(row * 256 + ((seg ^ f) * 32) + c * 8)
        assert conflicts('b64', ad) == 0

    vD = vAcc; vFl = vAcc + 8; vS = vAcc + 24
    def allreduce(r):
        k(f"v_add_f32_dpp {v(r)}, {v(r)}, {v(r)} quad_perm:[1,0,3,2] row_mask:0xf bank_mask:0xf")
        k(f"v_add_f32_dpp {v(r)}, {v(r)}, {v(r)} quad_perm:[2,3,0,1] row_mask:0xf bank_mask:0xf")
        k(f"v_add_f32_dpp {v(r)}, {v(r)}, {v(r)} row_ror:4 row_mask:0xf bank_mask:0xf")
        k(f"v_add_f32_dpp {v(r)}, {v(r)}, {v(r)} row_ror:8 row_mask:0xf bank_mask:0xf")
        for sw in ("v_permlane16_swap_b32", "v_permlane32_swap_b32"):
            k(f"v_mov_b32 {v(r+1)}, {v(r)}")
            k(f"{sw} {v(r)}, {v(r+1)}")
            k(f"v_add_f32 {v(r)}, {v(r)}, {v(r+1)}")
    vm_need([('ln',)])
    for i in range(8):
        k(f"v_lshlrev_b32 {v(vFl+2*i)}, 16, {v(vD+i)}")
        k(f"v_and_b32 {v(vFl+2*i+1)}, 0xffff0000, {v(vD+i)}")
    k(f"v_add_f32 {v(vS)}, {v(vFl)}, {v(vFl+1)}")
    for i in range(2, 16):
        k(f"v_add_f32 {v(vS)}, {v(vS)}, {v(vFl+i)}")
    allreduce(vS)
    k(f"v_mul_f32 {v(vS)}, 0x3ae38e39, {v(vS)}")
    k(f"v_cmp_gt_u32 vcc, 8, {v(vLane)}")
    k(f"v_cndmask_b32 {v(vS+2)}, 0, {v(vS)}, vcc")
    for i in range(8):
        k(f"v_sub_f32 {v(vFl+i)}, {v(vFl+i)}, {v(vS)}")
        k(f"v_sub_f32 {v(vFl+8+i)}, {v(vFl+8+i)}, {v(vS+2)}")
    k(f"v_mul_f32 {v(vS)}, {v(vFl)}, {v(vFl)}")
    for i in range(1, 16):
        k(f"v_fmac_f32 {v(vS)}, {v(vFl+i)}, {v(vFl+i)}")
    allreduce(vS)
    k(f"v_mov_b32 {v(vS+1)}, 0x3727c5ac")
    k(f"v_fmac_f32 {v(vS+1)}, 0x3ae38e39, {v(vS)}")
    k(f"v_rsq_f32 {v(vS)}, {v(vS+1)}")
    for i in range(16):
        k(f"v_mul_f32 {v(vFl+i)}, {v(vFl+i)}, {v(vS)}")
    for i in range(8):
        k(f"v_cvt_pk_bf16_f32 {v(vD+i)}, {v(vFl+2*i)}, {v(vFl+2*i+1)}")
    k(f"v_lshlrev_b32 {v(vS)}, 8, {v(vLane)}")
    k(f"v_add_u32 {v(vS+1)}, 16384, {v(vS)}")
    k(f"v_mov_b32 {v(vS+2)}, 0x7f000000")
    k(f"v_cndmask_b32 {v(vS+1)}, {v(vS+2)}, {v(vS+1)}, vcc")
    k(f"s_lshr_b32 {s(sT)}, s2, 1")
    k(f"s_mul_i32 {s(sT)}, {s(sT)}, 18432")
    k(f"s_and_b32 {s(sT2)}, s2, 1")
    k(f"s_lshl_b32 {s(sT2)}, {s(sT2)}, 3")
    k(f"s_add_u32 {s(sT2)}, {s(sT2)}, {s(sWV)}")
    k(f"s_lshl_b32 {s(sT2)}, {s(sT2)}, 4")
    k(f"s_add_u32 {s(sT)}, {s(sT)}, {s(sT2)}")
    srd(k, S_XI, sWS, WS_XNF, 2048 * 1152)
    k(f"buffer_store_dwordx4 {v(vD,4)}, {v(vS)}, {s(S_XI,4)}, {s(sT)} offen")
    k(f"buffer_store_dwordx4 {v(vD+4,4)}, {v(vS+1)}, {s(S_XI,4)}, {s(sT)} offen")
    vm.extend([('st',)] * 2)
    for i in range(128):
        k(f"v_mov_b32 {v(vAcc+i)}, 0")

    lblV = k.newlabel("vwave"); lblEp = k.newlabel("after")
    vm_need([('x', 0, 0), ('x', 0, 1), ('w', 0)])
    k("s_barrier")
    st_.stamp()
    k(f"s_cmp_ge_u32 {s(sWV)}, 4")
    k(f"s_cbranch_scc1 {lblV}")
    vm_saved = list(vm)

    def body(isv):
        pend = []
        def xoff(t, rb):
            j = t // 2
            base = [[vXr0, vXr1], [vXr0, vXr1], [vXr2, vXr3]][j % 3][t % 2]
            o = (j % 3 % 2) * XSL if j % 3 < 2 else 0
            o += rb * 2048
            return base, o
        def issue_x(gi):
            t, rb = divmod(gi, 8)
            if t >= NT: return
            b, o = xoff(t, rb)
            k(f"ds_read_b128 {v(vXf+(gi%4)*4,4)}, {v(b)} offset:{o}")
            pend.append(('x', gi))
        def issue_w(t, cb):
            k(f"ds_read_b64_tr_b16 {v(vWf+(t%2)*16+cb*4,2)}, {v(vWa+cb)} offset:{(t%4)*WSL}")
            k(f"ds_read_b64_tr_b16 {v(vWf+(t%2)*16+cb*4+2,2)}, {v(vWa+cb)} offset:{(t%4)*WSL+1024}")
            pend.append(('w0', t, cb)); pend.append(('w', t, cb))
        def need(tag):
            if tag in pend:
                i = pend.index(tag)
                k(f"s_waitcnt lgkmcnt({min(15, len(pend)-1-i)})")
                del pend[:i + 1]
        for cb in range(4): issue_w(0, cb)
        for gi in range(3): issue_x(gi)
        SYNC = 3
        for t in range(NT):
            for rb in range(8):
                gi = t * 8 + rb
                if rb == SYNC and t + 1 < NT:
                    tags = [('w', t + 1)]
                    if (t + 1) % 2 == 0: tags += [('x', (t + 1) // 2, 0), ('x', (t + 1) // 2, 1)]
                    vm_need(tags)
                    k("s_barrier")
                    if t + 3 < NT: D_w(t + 3)
                    if t // 2 + 2 < NT // 2: D_x(t // 2 + 2, t % 2)
                need(('x', gi))
                for cb in range(4):
                    if rb == 0: need(('w', t, cb))
                    acc = v(vAcc + (rb * 4 + cb) * 4, 4)
                    W_, X_ = v(vWf + (t % 2) * 16 + cb * 4, 4), v(vXf + (gi % 4) * 4, 4)
                    if isv: k(f"v_mfma_f32_16x16x32_bf16 {acc}, {X_}, {W_}, {acc}")
                    else:   k(f"v_mfma_f32_16x16x32_bf16 {acc}, {W_}, {X_}, {acc}")
                    if cb == 0: issue_x(gi + 3)
                    if cb == 2 and rb > SYNC and rb - SYNC - 1 < 4 and t + 1 < NT:
                        issue_w(t + 1, rb - SYNC - 1)
        st_.stamp()
        k(f"v_and_b32 {v(vT)}, 15, {v(vLane)}")
        k(f"v_lshrrev_b32 {v(vT+1)}, 4, {v(vLane)}")
        vP = vWf
        if not isv:
            k(f"s_lshl_b32 {s(sT)}, {s(sCG)}, 3")
            k(f"v_add_u32 {v(vT+1)}, {s(sT)}, {v(vT+1)}")
            k(f"v_xor_b32 {v(vT+1)}, {v(vT+1)}, {v(vT)}")
            k(f"v_lshlrev_b32 {v(vT)}, 8, {v(vT)}")
            k(f"v_lshl_add_u32 {v(vT+2)}, {v(vT+1)}, 4, {v(vT)}")
            k(f"v_xor_b32 {v(vT+3)}, 64, {v(vT+2)}")
            k(f"s_lshl_b32 {s(sOo)}, {s(sH)}, 19")
            k(f"s_lshl_b32 {s(sT)}, {s(sMB)}, 16")
            k(f"s_add_u32 {s(sOo)}, {s(sOo)}, {s(sT)}")
            k(f"s_lshl_b32 {s(sT)}, {s(sRG)}, 15")
            k(f"s_add_u32 {s(sOo)}, {s(sOo)}, {s(sT)}")
            for rb in range(8):
                for p in range(2):
                    o = vP + ((rb * 2 + p) % 8) * 4
                    for q in range(2):
                        A0 = vAcc + (rb * 4 + 2 * p + q) * 4
                        k(f"v_cvt_pk_bf16_f32 {v(o+2*q)}, {v(A0)}, {v(A0+1)}")
                        k(f"v_cvt_pk_bf16_f32 {v(o+2*q+1)}, {v(A0+2)}, {v(A0+3)}")
                    k(f"buffer_store_dwordx4 {v(o,4)}, {v(vT+2+p)}, {s(S_O,4)}, {s(sOo)} offen")
                if rb < 7: k(f"s_add_u32 {s(sOo)}, {s(sOo)}, 4096")
        else:
            k(f"v_and_b32 {v(vT+2)}, 7, {v(vT)}")
            k(f"v_xor_b32 {v(vT+1)}, {v(vT+1)}, {v(vT+2)}")
            k(f"v_lshlrev_b32 {v(vT)}, 7, {v(vT)}")
            k(f"v_lshl_add_u32 {v(vT+2)}, {v(vT+1)}, 4, {v(vT)}")
            k(f"v_xor_b32 {v(vT+3)}, 64, {v(vT+2)}")
            k(f"s_lshl_b32 {s(sOo)}, {s(sH)}, 19")
            k(f"s_lshl_b32 {s(sT)}, {s(sMB)}, 16")
            k(f"s_add_u32 {s(sOo)}, {s(sOo)}, {s(sT)}")
            k(f"s_lshl_b32 {s(sT)}, {s(sRG)}, 15")
            k(f"s_add_u32 {s(sOo)}, {s(sOo)}, {s(sT)}")
            k(f"s_and_b32 {s(sT)}, {s(sCG)}, 1")
            k(f"s_lshl_b32 {s(sT)}, {s(sT)}, 13")
            k(f"s_add_u32 {s(sOo)}, {s(sOo)}, {s(sT)}")
            k(f"s_add_u32 {s(sOo)}, {s(sOo)}, {WS_VT-WS_K}")
            n = 0
            for G in range(4):
                for cb in range(4):
                    o = vP + (n % 8) * 4; n += 1
                    for q in range(2):
                        A0 = vAcc + ((2 * G + q) * 4 + cb) * 4
                        k(f"v_cvt_pk_bf16_f32 {v(o+2*q)}, {v(A0)}, {v(A0+1)}")
                        k(f"v_cvt_pk_bf16_f32 {v(o+2*q+1)}, {v(A0+2)}, {v(A0+3)}")
                    if cb == 2 :
                        k(f"s_add_u32 {s(sT)}, {s(sOo)}, 4096")
                    so = sOo if cb < 2 else sT
                    k(f"buffer_store_dwordx4 {v(o,4)}, {v(vT+2+G%2)}, {s(S_O,4)}, {s(so)} offen offset:{(cb%2)*2048}")
                if G == 1: k(f"s_add_u32 {s(sOo)}, {s(sOo)}, 16384")
    body(False)
    k(f"s_branch {lblEp}")
    k.label(lblV)
    vm[:] = vm_saved
    n0 = st_.n
    st_.n -= 1 if st_.on else 0
    body(True)
    k.label(lblEp)
    st_.stamp()
    st_.dump(sWS, sWV, 200 * MB, vT)
    k.label(done)
    k("s_endpgm")
    return k, nv, 3 * XSL + 4 * WSL, 0
```

```python
from asmlib import *
from layout import *
from k_sg2 import srd

NT_A, NT_B, NT_C = 1152, 1296, 2592
NTASK = NT_A + NT_B + NT_C

class Repack:
    def __init__(self, k, sWS, sPtr, sS, S_SRC, S_DST, vLane, vB):
        self.k, self.sWS, self.sPtr, self.sS, self.S_SRC, self.S_DST, self.vLane, self.vB = k, sWS, sPtr, sS, S_SRC, S_DST, vLane, vB
    def load(self, sTask):
        k, sS, vB, vLane = self.k, self.sS, self.vB, self.vLane
        sT, sSt, sR, sRow, sJ1, sJ2, sKC, sD = range(sS, sS + 8)
        vSrc, vDst, vCs, vA, vC = vB + 18, vB + 16, vB + 17, vB + 19, vB + 20
        lB, lC, lJ, lAB = k.newlabel("rB"), k.newlabel("rC"), k.newlabel("rJ"), k.newlabel("rAB")
        k(f"v_and_b32 {v(vC)}, 15, {v(vLane)}")
        k(f"v_lshrrev_b32 {v(vA)}, 4, {v(vLane)}")
        k(f"s_cmp_ge_u32 {s(sTask)}, {NT_A+NT_B}")
        k(f"s_cbranch_scc1 {lC}")
        k(f"s_mov_b32 {s(sKC)}, 0")
        k(f"s_cmp_ge_u32 {s(sTask)}, {NT_A}")
        k(f"s_cbranch_scc1 {lB}")
        k(f"s_mul_i32 {s(sSt)}, {s(sTask)}, 7282")
        k(f"s_lshr_b32 {s(sSt)}, {s(sSt)}, 16")
        k(f"s_mul_i32 {s(sR)}, {s(sSt)}, 9")
        k(f"s_sub_u32 {s(sR)}, {s(sTask)}, {s(sR)}")
        k(f"s_lshl_b32 {s(sRow)}, {s(sSt)}, 5")
        k(f"s_mov_b32 {s(sJ1)}, {2*1152}")
        k(f"s_mov_b32 {s(sJ2)}, {16*1152}")
        k(f"v_mul_u32_u24 {v(vSrc)}, {4*1152}, {v(vA)}")
        srd(k, self.S_SRC, self.sPtr, 0, 4096 * 1152)
        k(f"s_mov_b32 {s(sD)}, 128")
        k(f"s_mov_b32 {s(sT)}, {WS_WOF}")
        k(f"s_branch {lAB}")
        k.label(lB)
        k(f"s_sub_u32 {s(sT)}, {s(sTask)}, {NT_A}")
        k(f"s_mul_i32 {s(sSt)}, {s(sT)}, 7282")
        k(f"s_lshr_b32 {s(sSt)}, {s(sSt)}, 16")
        k(f"s_mul_i32 {s(sR)}, {s(sSt)}, 9")
        k(f"s_sub_u32 {s(sR)}, {s(sT)}, {s(sR)}")
        k(f"s_lshr_b32 {s(sRow)}, {s(sSt)}, 1")
        k(f"s_mul_i32 {s(sRow)}, {s(sRow)}, 72")
        k(f"s_and_b32 {s(sT)}, {s(sSt)}, 1")
        k(f"s_lshl_b32 {s(sT)}, {s(sT)}, 5")
        k(f"s_add_u32 {s(sRow)}, {s(sRow)}, {s(sT)}")
        k(f"s_sub_u32 {s(sT)}, {s(sSt)}, 128")
        k(f"s_mul_i32 {s(sT)}, {s(sT)}, 288")
        k(f"s_add_u32 {s(sT)}, {s(sT)}, 64")
        k(f"s_cmp_ge_u32 {s(sSt)}, 128")
        k(f"s_cselect_b32 {s(sRow)}, {s(sT)}, {s(sRow)}")
        k(f"s_cselect_b32 {s(sJ1)}, 72, 8")
        k(f"s_mul_i32 {s(sJ1)}, {s(sJ1)}, 1152")
        k(f"s_lshl_b32 {s(sJ2)}, {s(sJ1)}, 1")
        k(f"v_mul_u32_u24 {v(vSrc)}, {2*1152}, {v(vA)}")
        srd(k, self.S_SRC, self.sPtr + 2, 0, 4608 * 1152)
        k(f"s_mov_b32 {s(sD)}, 144")
        k(f"s_mov_b32 {s(sT)}, {WS_WDF}")
        k.label(lAB)
        k(f"s_lshl_b32 {s(sR)}, {s(sR)}, 6")
        k(f"v_lshl_add_u32 {v(vC)}, {v(vC)}, 2, {s(sR)}")
        k(f"v_lshl_add_u32 {v(vSrc)}, {v(vC)}, 1, {v(vSrc)}")
        k(f"s_mul_i32 {s(sRow)}, {s(sRow)}, 1152")
        for c in range(0, 576, 4): assert (c * 911) >> 16 == c // 72
        k(f"v_mul_u32_u24 {v(vDst)}, 911, {v(vC)}")
        k(f"v_lshrrev_b32 {v(vDst)}, 16, {v(vDst)}")
        k(f"v_mul_u32_u24 {v(vCs)}, 72, {v(vDst)}")
        k(f"v_sub_u32 {v(vC)}, {v(vC)}, {v(vCs)}")
        k(f"v_mul_u32_u24 {v(vDst)}, {s(sD)}, {v(vDst)}")
        k(f"v_add_u32 {v(vDst)}, {s(sSt)}, {v(vDst)}")
        k(f"v_mul_u32_u24 {v(vDst)}, 4608, {v(vDst)}")
        k(f"v_lshrrev_b32 {v(vCs)}, 4, {v(vC)}")
        k(f"v_lshl_add_u32 {v(vDst)}, {v(vCs)}, 10, {v(vDst)}")
        k(f"v_and_b32 {v(vC)}, 15, {v(vC)}")
        k(f"v_lshl_add_u32 {v(vDst)}, {v(vC)}, 4, {v(vDst)}")
        k(f"v_cmp_eq_u32 vcc, 4, {v(vCs)}")
        k(f"v_lshlrev_b32 {v(vC)}, 8, {v(vA)}")
        k(f"v_lshlrev_b32 {v(vCs)}, 7, {v(vA)}")
        k(f"v_cndmask_b32 {v(vC)}, {v(vC)}, {v(vCs)}, vcc")
        k(f"v_add3_u32 {v(vDst)}, {v(vDst)}, {v(vC)}, {s(sT)}")
        k(f"s_mov_b32 {s(sD)}, 1152")
        k(f"s_branch {lJ}")
        k.label(lC)
        k(f"s_mov_b32 {s(sKC)}, 1")
        k(f"s_sub_u32 {s(sT)}, {s(sTask)}, {NT_A+NT_B}")
        k(f"s_cmp_ge_u32 {s(sT)}, 1296")
        k(f"s_cselect_b32 {s(sD)}, 1296, 0")
        k(f"s_cselect_b32 {s(self.S_SRC)}, {s(self.sPtr+6)}, {s(self.sPtr+4)}")
        k(f"s_cselect_b32 {s(self.S_SRC+1)}, {s(self.sPtr+7)}, {s(self.sPtr+5)}")
        k(f"s_cselect_b32 {s(sJ1)}, 2, 0")
        k(f"s_mov_b32 {s(self.S_SRC+2)}, {576*9216}")
        k(f"s_mov_b32 {s(self.S_SRC+3)}, 0x00020000")
        k(f"s_sub_u32 {s(sT)}, {s(sT)}, {s(sD)}")
        for t in range(1296): assert (t * 3641) >> 18 == t // 72 and (t * 7282) >> 16 == t // 9
        k(f"s_mul_i32 {s(sSt)}, {s(sT)}, 3641")
        k(f"s_lshr_b32 {s(sSt)}, {s(sSt)}, 18")
        k(f"s_mul_i32 {s(sR)}, {s(sSt)}, 72")
        k(f"s_sub_u32 {s(sR)}, {s(sT)}, {s(sR)}")
        k(f"s_lshl_b32 {s(sR)}, {s(sR)}, 6")
        k(f"v_lshl_add_u32 {v(vC)}, {v(vC)}, 2, {s(sR)}")
        k(f"v_mul_u32_u24 {v(vSrc)}, {8*9216}, {v(vA)}")
        k(f"v_lshl_add_u32 {v(vSrc)}, {v(vC)}, 1, {v(vSrc)}")
        k(f"s_mul_i32 {s(sRow)}, {s(sSt)}, {32*9216}")
        k(f"v_and_b32 {v(vCs)}, 7, {v(vC)}")
        k(f"v_lshlrev_b32 {v(vCs)}, 1, {v(vCs)}")
        k(f"v_add_u32 {v(vCs)}, {s(sJ1)}, {v(vCs)}")
        k(f"v_lshrrev_b32 {v(vC)}, 3, {v(vC)}")
        k(f"v_mul_u32_u24 {v(vDst)}, 18, {v(vC)}")
        k(f"v_add_u32 {v(vDst)}, {s(sSt)}, {v(vDst)}")
        k(f"v_lshlrev_b32 {v(vDst)}, 10, {v(vDst)}")
        k(f"v_lshl_add_u32 {v(vDst)}, {v(vA)}, 8, {v(vDst)}")
        k(f"v_lshl_add_u32 {v(vDst)}, {v(vCs)}, 4, {v(vDst)}")
        k(f"v_add_u32 {v(vDst)}, {WS_WGU}, {v(vDst)}")
        k(f"v_lshl_add_u32 {v(vCs)}, {v(vC)}, 4, {v(vCs)}")
        k(f"s_lshl_b32 {s(sT)}, {s(sSt)}, 2")
        k(f"v_add_u32 {v(vA)}, {s(sT)}, {v(vA)}")
        k(f"v_mul_u32_u24 {v(vA)}, 9216, {v(vA)}")
        k(f"v_add_lshl_u32 {v(vCs)}, {v(vCs)}, {v(vA)}, 2")
        k(f"v_add_u32 {v(vCs)}, {WS_CSP}, {v(vCs)}")
        k(f"s_mov_b32 {s(sJ1)}, {2*9216}")
        k(f"s_mov_b32 {s(sJ2)}, {4*9216}")
        k(f"s_mov_b32 {s(sD)}, 9216")
        k.label(lJ)
        k(f"v_add_u32 {v(vA)}, {s(sD)}, {v(vSrc)}")
        for jq in range(4):
            if jq == 1: k(f"s_add_u32 {s(sT)}, {s(sRow)}, {s(sJ1)}")
            if jq == 2: k(f"s_add_u32 {s(sRow)}, {s(sRow)}, {s(sJ2)}")
            if jq == 3: k(f"s_add_u32 {s(sT)}, {s(sRow)}, {s(sJ1)}")
            so = sRow if jq % 2 == 0 else sT
            k(f"buffer_load_dwordx2 {v(vB+4*jq,2)}, {v(vSrc)}, {s(self.S_SRC,4)}, {s(so)} offen")
            k(f"buffer_load_dwordx2 {v(vB+4*jq+2,2)}, {v(vA)}, {s(self.S_SRC,4)}, {s(so)} offen")
    def finish(self):
        k, sS, vB = self.k, self.sS, self.vB
        sT, sKC = sS, sS + 6
        vDst, vCs, vO = vB + 16, vB + 17, vB + 20
        k(f"s_mov_b32 {s(sT)}, 0x05040100")
        k(f"s_mov_b32 {s(sS+1)}, 0x07060302")
        for q in range(4):
            for jq in range(4):
                lo, hi = vB + 4 * jq + q // 2, vB + 4 * jq + 2 + q // 2
                k(f"v_perm_b32 {v(vO+4*q+jq)}, {v(hi)}, {v(lo)}, {s(sT if q % 2 == 0 else sS+1)}")
        lC, lE = k.newlabel("fC"), k.newlabel("fE")
        k(f"s_cmp_lg_u32 {s(sKC)}, 0")
        k(f"s_cbranch_scc1 {lC}")
        for q in range(4):
            k(f"buffer_store_dwordx4 {v(vO+4*q,4)}, {v(vDst)}, {s(self.S_DST,4)}, 0 offen offset:{16*q}")
        k(f"s_branch {lE}")
        k.label(lC)
        for q in range(4):
            k(f"buffer_store_dwordx4 {v(vO+4*q,4)}, {v(vDst)}, {s(self.S_DST,4)}, 0 offen offset:{[0,16,64,80][q]}")
        k(f"s_mov_b32 {s(sT)}, 0x3f803f80")
        for q in range(4):
            k(f"v_mov_b32 {v(vB+q)}, 0")
            for jq in range(4):
                k(f"v_dot2c_f32_bf16 {v(vB+q)}, {s(sT)}, {v(vO+4*q+jq)}")
        k("s_nop 2")
        k(f"buffer_store_dwordx2 {v(vB,2)}, {v(vCs)}, {s(self.S_DST,4)}, 0 offen")
        k(f"buffer_store_dwordx2 {v(vB+2,2)}, {v(vCs)}, {s(self.S_DST,4)}, 0 offen offset:16")
        k.label(lE)

def gen_repack(name):
    k = Kernel(name)
    done = k.newlabel("done")
    k(f"s_cmp_ge_u32 s2, 256")
    k(f"s_cbranch_scc1 {done}")
    k("s_load_dwordx2 s[24:25], s[0:1], 96")
    k("s_load_dwordx2 s[26:27], s[0:1], 40")
    k("s_load_dwordx2 s[28:29], s[0:1], 72")
    k("s_load_dwordx2 s[30:31], s[0:1], 56")
    k("s_load_dwordx2 s[32:33], s[0:1], 64")
    k("v_lshrrev_b32 v2, 6, v0"); k("v_and_b32 v1, 63, v0"); k("v_readfirstlane_b32 s34, v2")
    k("s_lshl_b32 s35, s2, 3"); k("s_add_u32 s35, s35, s34")
    k("s_waitcnt lgkmcnt(0)")
    srd(k, 12, 24, 0, WS_SIZE)
    rp = Repack(k, 24, 26, 40, 8, 12, 1, 4)
    loop = k.newlabel("loop"); k.label(loop)
    rp.load(35)
    k("s_waitcnt vmcnt(0)")
    rp.finish()
    k("s_add_u32 s35, s35, 2048")
    k(f"s_cmp_lt_u32 s35, {NTASK}")
    k(f"s_cbranch_scc1 {loop}")
    k.label(done); k("s_endpgm")
    return k, 48, 0, 0
```

```python
from asmlib import *
from layout import *

def srd(k, base, ptr, off, size):
    if off:
        k(f"s_add_u32 {s(base)}, {s(ptr)}, {off}")
        k(f"s_addc_u32 {s(base+1)}, {s(ptr+1)}, 0")
    else:
        k(f"s_mov_b32 {s(base)}, {s(ptr)}")
        k(f"s_mov_b32 {s(base+1)}, {s(ptr+1)}")
    k(f"s_mov_b32 {s(base+2)}, {size}")
    k(f"s_mov_b32 {s(base+3)}, 0x00020000")

def gen_sg2(name, KD, xoff, woff, res_arg, res_off, out_arg, out_off, extras, NS=4, D=None, exp=''):
    k = Kernel(name)
    NKS = KD // 32
    NST = NKS // 4
    D = NS - 1 if D is None else D
    WREG = 21504
    PITCH = 336
    S_X, S_W, S_R, S_O, S_E = 8, 12, 16, 20, 24
    sWS, sRp, sOp = 28, 30, 32
    sRT, sCT, sWV, sXo, sWo, sM0, sCnt, sT, sOwn = 34, 35, 36, 37, 38, 39, 40, 41, 42
    vLane = 1; vXo = 2; vWo = 6; vWh = 7; vT = 8
    vF = 16
    NV_SL = min(NS, 4)
    vAcc = vF + NV_SL * 36
    nv = vAcc + 80
    nagpr = (NS - NV_SL) * 36
    def fr(slot, off):
        return v(vF + slot * 36 + off, 4) if slot < NV_SL else a((slot - NV_SL) * 36 + off, 4)
    done = k.newlabel("done")
    k(f"s_cmp_ge_u32 s2, 256")
    k(f"s_cbranch_scc1 {done}")
    k(f"s_load_dwordx2 {s(sWS,2)}, s[0:1], 96")
    k(f"s_load_dwordx2 {s(sRp,2)}, s[0:1], {res_arg}")
    k(f"s_load_dwordx2 {s(sOp,2)}, s[0:1], {out_arg}")
    k(f"v_lshrrev_b32 {v(vT)}, 6, v0")
    k(f"v_and_b32 {v(vLane)}, 63, v0")
    k(f"v_readfirstlane_b32 {s(sWV)}, {v(vT)}")
    k(f"s_and_b32 {s(sRT)}, s2, 7")
    k(f"s_lshl_b32 {s(sRT)}, {s(sRT)}, 2")
    k(f"s_lshr_b32 {s(sT)}, s2, 3")
    k(f"s_and_b32 {s(sCT)}, {s(sT)}, 3")
    k(f"s_add_u32 {s(sRT)}, {s(sRT)}, {s(sCT)}")
    k(f"s_lshr_b32 {s(sCT)}, {s(sT)}, 2")
    k(f"v_lshlrev_b32 {v(vXo)}, 4, {v(vLane)}")
    for b in range(1, 4):
        k(f"v_add_u32 {v(vXo+b)}, {b*NKS*1024}, {v(vXo)}")
    k(f"v_mov_b32 {v(vWo)}, {v(vXo)}")
    k(f"v_lshrrev_b32 {v(vT)}, 4, {v(vLane)}")
    k(f"v_and_b32 {v(vT+1)}, 15, {v(vLane)}")
    k(f"v_lshl_add_u32 {v(vT)}, {v(vT)}, 3, {v(vT+1)}")
    k(f"v_lshlrev_b32 {v(vT)}, 4, {v(vT)}")
    k(f"v_add_u32 {v(vT)}, 4096, {v(vT)}")
    k(f"v_cmp_gt_u32 vcc, 8, {v(vT+1)}")
    k(f"v_mov_b32 {v(vT+2)}, 0x7f000000")
    k(f"v_cndmask_b32 {v(vWh)}, {v(vT+2)}, {v(vT)}, vcc")
    k(f"s_mul_i32 {s(sM0)}, {s(sWV)}, {WREG}")
    k(f"s_waitcnt lgkmcnt(0)")
    srd(k, S_X, sWS, xoff, 128 * NKS * 1024)
    srd(k, S_W, sWS, woff, 8 * NKS * 4608)
    k(f"s_mul_i32 {s(sXo)}, {s(sRT)}, {4*NKS if 'samex' not in exp else 0}")
    k(f"s_add_u32 {s(sXo)}, {s(sXo)}, {s(sWV)}")
    k(f"s_lshl_b32 {s(sXo)}, {s(sXo)}, 10")
    k(f"s_mul_i32 {s(sWo)}, {s(sCT)}, {NKS if 'samew' not in exp else 0}")
    k(f"s_add_u32 {s(sWo)}, {s(sWo)}, {s(sWV)}")
    k(f"s_mul_i32 {s(sWo)}, {s(sWo)}, 4608")

    if 'rot' in exp:
        pass
    def issue(slot):
        for b in range(4):
            k(f"buffer_load_dwordx4 {fr(slot,b*4)}, {v(vXo+b)}, {s(S_X,4)}, {s(sXo)} offen")
        for i in range(4):
            k(f"buffer_load_dwordx4 {fr(slot,16+i*4)}, {v(vWo)}, {s(S_W,4)}, {s(sWo)} offen offset:{1024*i}")
        k(f"buffer_load_dwordx4 {fr(slot,32)}, {v(vWh)}, {s(S_W,4)}, {s(sWo)} offen")
        k(f"s_add_u32 {s(sXo)}, {s(sXo)}, 4096")
        k(f"s_add_u32 {s(sWo)}, {s(sWo)}, {4*4608}")

    for sl in range(D):
        issue(sl)
    srd(k, S_R, sRp, res_off, 2048 * 1152)
    srd(k, S_O, sOp, out_off, 2048 * 1152)
    if extras:
        srd(k, S_E, sWS, WS_HF, WS_STAT - WS_HF + 2048 * 64)
    for i in range(80):
        k(f"v_mov_b32 {v(vAcc+i)}, 0")

    def step(slot, outstanding_after, do_issue):
        if do_issue:
            issue((slot + D) % NS)
            outstanding_after += 1
        k(f"s_waitcnt vmcnt({9*outstanding_after})")
        for cb in range(5):
            for rb in range(4 if 'nomfma' not in exp else 0):
                acc = v(vAcc + (cb * 4 + rb) * 4, 4)
                k(f"v_mfma_f32_16x16x32_bf16 {acc}, {fr(slot,16+cb*4)}, {fr(slot,rb*4)}, {acc}")

    nloop = NST // NS - 1
    k(f"s_mov_b32 {s(sCnt)}, {nloop}")
    loop = k.newlabel("loop")
    k.label(loop)
    for sl in range(NS):
        step(sl, D - 1, True)
    k(f"s_sub_u32 {s(sCnt)}, {s(sCnt)}, 1")
    k(f"s_cmp_lg_u32 {s(sCnt)}, 0")
    k(f"s_cbranch_scc1 {loop}")
    k.check_loop(loop)
    for sl in range(NS):
        if sl + D < NS:
            step(sl, D - 1, True)
        else:
            step(sl, NS - 1 - sl, False)
    k(f"s_mul_i32 {s(sOwn)}, {s(sCT)}, 144")
    k(f"s_lshl_b32 {s(sCnt)}, {s(sRT)}, 6")
    k(f"s_mul_i32 {s(sCnt)}, {s(sCnt)}, 1152")
    k(f"s_add_u32 {s(sCnt)}, {s(sCnt)}, {s(sOwn)}")
    for r in range(3):
        b = vF + r * 48
        vI, vRow, vC8, vL, vG, vE, vRs, vP = b, b + 1, b + 2, b + 3, b + 4, b + 5, b + 8, b + 12
        k(f"v_add_u32 {v(vI)}, {256*r}, v0")
        k(f"v_mul_u32_u24 {v(vRow)}, 1821, {v(vI)}")
        k(f"v_lshrrev_b32 {v(vRow)}, 14, {v(vRow)}")
        k(f"v_mul_u32_u24 {v(vC8)}, 9, {v(vRow)}")
        k(f"v_sub_u32 {v(vC8)}, {v(vI)}, {v(vC8)}")
        k(f"v_mul_u32_u24 {v(vL)}, {PITCH}, {v(vRow)}")
        k(f"v_lshl_add_u32 {v(vL)}, {v(vC8)}, 5, {v(vL)}")
        k(f"v_mul_u32_u24 {v(vG)}, 1152, {v(vRow)}")
        k(f"v_lshl_add_u32 {v(vG)}, {v(vC8)}, 4, {v(vG)}")
        if extras:
            k(f"v_lshrrev_b32 {v(vE)}, 4, {v(vRow)}")
            k(f"v_mul_u32_u24 {v(vE)}, 18432, {v(vE)}")
            k(f"v_lshl_add_u32 {v(vE)}, {v(vC8)}, 8, {v(vE)}")
            k(f"v_and_b32 {v(vRs)}, 15, {v(vRow)}")
            k(f"v_lshl_add_u32 {v(vE)}, {v(vRs)}, 4, {v(vE)}")
        if r == 2:
            k(f"v_cmp_gt_u32 vcc, 576, {v(vI)}")
            k(f"v_mov_b32 {v(vRs)}, 0x7f000000")
            k(f"v_cndmask_b32 {v(vG)}, {v(vRs)}, {v(vG)}, vcc")
            k(f"v_cndmask_b32 {v(vL)}, 0, {v(vL)}, vcc")
            if extras:
                k(f"v_cndmask_b32 {v(vE)}, {v(vRs)}, {v(vE)}, vcc")
        k(f"buffer_load_dwordx4 {v(vRs,4)}, {v(vG)}, {s(S_R,4)}, {s(sCnt)} offen")
    k(f"v_and_b32 {v(vT)}, 15, {v(vLane)}")
    k(f"v_mul_u32_u24 {v(vT)}, {PITCH}, {v(vT)}")
    k(f"v_lshrrev_b32 {v(vT+1)}, 4, {v(vLane)}")
    k(f"v_lshl_add_u32 {v(vT)}, {v(vT+1)}, 4, {v(vT)}")
    k(f"v_add_u32 {v(vT)}, {s(sM0)}, {v(vT)}")
    for cb in range(5):
        for rb in range(4):
            k(f"ds_write_b128 {v(vT)}, {v(vAcc+(cb*4+rb)*4,4)} offset:{rb*16*PITCH+cb*64}")
    if extras:
        k(f"s_mul_i32 {s(sT)}, {s(sRT)}, {4*18432}")
        k(f"s_mul_i32 {s(sOwn)}, {s(sCT)}, {9*256}")
        k(f"s_add_u32 {s(sT)}, {s(sT)}, {s(sOwn)}")
    k("s_waitcnt lgkmcnt(0)")
    k("s_barrier")
    for r in range(3):
        b = vF + r * 48
        vL, vP = b + 3, b + 12
        for w in range(4):
            k(f"ds_read_b128 {v(vP+w*8,4)}, {v(vL)} offset:{w*WREG}")
            k(f"ds_read_b128 {v(vP+w*8+4,4)}, {v(vL)} offset:{w*WREG+16}")
    STAT_L = 4 * WREG
    for r in range(3):
        b = vF + r * 48
        vI, vRow, vC8, vL, vG, vE, vRs, vP = b, b + 1, b + 2, b + 3, b + 4, b + 5, b + 8, b + 12
        k(f"s_waitcnt lgkmcnt({min(15,8*(2-r))})" if not extras else f"s_waitcnt lgkmcnt({[15,8,0][r]})")
        for j in range(8):
            k(f"v_add_f32 {v(vP+j)}, {v(vP+j)}, {v(vP+8+j)}")
            k(f"v_add_f32 {v(vP+16+j)}, {v(vP+16+j)}, {v(vP+24+j)}")
        if r == 0:
            k(f"s_waitcnt vmcnt(0)")
        for j in range(8):
            k(f"v_add_f32 {v(vP+j)}, {v(vP+j)}, {v(vP+16+j)}")
        for j in range(4):
            k(f"v_cvt_pk_bf16_f32 {v(vP+8+j)}, {v(vP+2*j)}, {v(vP+2*j+1)}")
        for j in range(4):
            k(f"v_lshlrev_b32 {v(vP+2*j)}, 16, {v(vP+8+j)}")
            k(f"v_and_b32 {v(vP+2*j+1)}, 0xffff0000, {v(vP+8+j)}")
            k(f"v_lshlrev_b32 {v(vP+16+2*j)}, 16, {v(vRs+j)}")
            k(f"v_and_b32 {v(vP+16+2*j+1)}, 0xffff0000, {v(vRs+j)}")
        for j in range(8):
            k(f"v_add_f32 {v(vP+j)}, {v(vP+j)}, {v(vP+16+j)}")
        for j in range(4):
            k(f"v_cvt_pk_bf16_f32 {v(vP+8+j)}, {v(vP+2*j)}, {v(vP+2*j+1)}")
        k(f"buffer_store_dwordx4 {v(vP+8,4)}, {v(vG)}, {s(S_O,4)}, {s(sCnt)} offen")
        if extras:
            k(f"buffer_store_dwordx4 {v(vP+8,4)}, {v(vE)}, {s(S_E,4)}, {s(sT)} offen")
            for j in range(4):
                k(f"v_lshlrev_b32 {v(vP+2*j)}, 16, {v(vP+8+j)}")
                k(f"v_and_b32 {v(vP+2*j+1)}, 0xffff0000, {v(vP+8+j)}")
            k(f"v_add_f32 {v(vP+16)}, {v(vP)}, {v(vP+1)}")
            k(f"v_mul_f32 {v(vP+17)}, {v(vP)}, {v(vP)}")
            k(f"v_fmac_f32 {v(vP+17)}, {v(vP+1)}, {v(vP+1)}")
            for j in range(2, 8):
                k(f"v_add_f32 {v(vP+16)}, {v(vP+16)}, {v(vP+j)}")
                k(f"v_fmac_f32 {v(vP+17)}, {v(vP+j)}, {v(vP+j)}")
            k(f"v_lshlrev_b32 {v(vI)}, 3, {v(vI)}")
            k(f"v_add_u32 {v(vI)}, {STAT_L}, {v(vI)}")
            k(f"ds_write_b64 {v(vI)}, {v(vP+16,2)}")
    if extras:
        k("s_waitcnt lgkmcnt(0)")
        k("s_barrier")
        lcs = k.newlabel("cs")
        k(f"s_cmp_eq_u32 {s(sWV)}, 1")
        k(f"s_cbranch_scc1 {lcs}")
        k(f"s_cmp_lg_u32 {s(sWV)}, 0")
        k(f"s_cbranch_scc1 {done}")
        b = vF
        k(f"v_mul_u32_u24 {v(b)}, 72, {v(vLane)}")
        k(f"v_add_u32 {v(b)}, {STAT_L}, {v(b)}")
        for j in range(9):
            k(f"ds_read_b64 {v(b+2+2*j,2)}, {v(b)} offset:{8*j}")
        k(f"s_lshl_b32 {s(sT)}, {s(sRT)}, 12")
        k(f"s_lshl_b32 {s(sOwn)}, {s(sCT)}, 3")
        k(f"s_add_u32 {s(sT)}, {s(sT)}, {s(sOwn)}")
        k(f"s_add_u32 {s(sT)}, {s(sT)}, {WS_STAT-WS_HF}")
        k(f"v_lshlrev_b32 {v(b+1)}, 6, {v(vLane)}")
        k("s_waitcnt lgkmcnt(0)")
        for j in range(1, 9):
            k(f"v_add_f32 {v(b+2)}, {v(b+2)}, {v(b+2+2*j)}")
            k(f"v_add_f32 {v(b+3)}, {v(b+3)}, {v(b+3+2*j)}")
        k(f"buffer_store_dwordx2 {v(b+2,2)}, {v(b+1)}, {s(S_E,4)}, {s(sT)} offen")
        k(f"s_branch {done}")
        k.label(lcs)
        srd(k, S_X, sWS, WS_CSP, 72 * 9216 * 4)
        srd(k, S_W, sWS, WS_CS, 9216 * 4)
        k(f"v_lshlrev_b32 {v(b)}, 2, {v(vLane)}")
        k(f"v_cmp_gt_u32 vcc, 36, {v(vLane)}")
        k(f"v_mov_b32 {v(b+1)}, 0x7f000000")
        k(f"v_cndmask_b32 {v(b)}, {v(b+1)}, {v(b)}, vcc")
        k(f"s_mul_i32 {s(sT)}, s2, 144")
        k(f"s_mov_b32 {s(sOwn)}, {s(sT)}")
        for j in range(72):
            k(f"buffer_load_dword {v(b+2+j)}, {v(b)}, {s(S_X,4)}, {s(sOwn)} offen")
            if j < 71: k(f"s_add_u32 {s(sOwn)}, {s(sOwn)}, {9216*4}")
            if j == 59: k("s_waitcnt vmcnt(0)")
        k("s_waitcnt vmcnt(0)")
        for j in range(1, 72):
            k(f"v_add_f32 {v(b+2)}, {v(b+2)}, {v(b+2+j)}")
        k(f"buffer_store_dword {v(b+2)}, {v(b)}, {s(S_W,4)}, {s(sT)} offen")
    k.label(done)
    k("s_endpgm")
    nv = max(nv, vF + 3 * 48)
    return k, nv, 4 * WREG + 768 * 8, nagpr
```

```python
MB = 1 << 20
WS_XNF  = 0 * MB
WS_H    = 4 * MB
WS_HF   = 8 * MB
WS_STAT = 12 * MB
WS_CS   = 13 * MB
WS_K    = 16 * MB
WS_VT   = 32 * MB
WS_CTX  = 48 * MB
WS_ACT  = 64 * MB
WS_WOF  = 84 * MB
WS_WDF  = 90 * MB
WS_WGU  = 96 * MB
WS_WQF  = 108 * MB
WS_Q    = 116 * MB
WS_SIZE = 268435456

def kmapA(g, j):
    return 16 * (g // 2) + 4 * (g % 2) + (j % 4) + 8 * (j // 4)
def kmapB(g, j):
    return 4 * g + (j % 4) + 16 * (j // 4)
def act_k(s, g, j):
    if s < 128:
        ft, cg, half = s // 4, (s // 2) % 2, s % 2
        return 144 * ft + 72 * cg + 8 * (4 * half + j // 2) + 2 * g + j % 2
    t = (s - 128) * 4 + j // 2
    return 72 * t + 64 + 2 * g + j % 2
WS_CSP  = 124 * MB
```

```python
from asmlib import *
from layout import *
from k_sg2 import gen_sg2
from k_ffnup import gen_ffnup
from k_kv import gen_kv
from k_attn2 import gen_attn
from k_repack import gen_repack
import sys
out = sys.argv[1] if len(sys.argv) > 1 else "../cdna_kernels/sequential_preLN__compressed_kv_cla__swiglu_ffn__prompt.s"
ref = open("../cdna_kernels/sequential_preLN__compressed_kv_cla__swiglu_ffn__prompt.s.ref").read().split("\n")
hdr = "\n".join(l for l in ref[:14]) + "\n"
ks = [("k0_repack_kernel", gen_repack("k0_repack_kernel"), 512),
      ("k1_kv_kernel", gen_kv("k1_kv_kernel"), 512),
      ("k2_attn_kernel", gen_attn("k2_attn_kernel", "prio"), 512),
      ("k3_outproj_kernel", gen_sg2("k3_outproj_kernel", 4096, WS_CTX, WS_WOF, 0, 0, 96, WS_H, True, 4, 3), 256),
      ("k4_up_kernel", gen_ffnup("k4_up_kernel"), 512),
      ("k5_down_kernel", gen_sg2("k5_down_kernel", 4608, WS_ACT, WS_WDF, 96, WS_H, 80, 0, False, 4, 3), 256)]
body = '.amdgcn_target "amdgcn-amd-amdhsa--gfx950"\n'
for name, (k, nv, lds, na), blk in ks:
    hdr += f"; @launch kernel={name} grid=(256,1,1) block=({blk},1,1) lds={lds}\n"
    body += kernel_text(k, nv, agprs=na)
    print(name, k.count(), k.nops_inserted, nv, na, lds)
open(out, "w").write(hdr + body)
```

```python
from asmlib import *
from layout import *
from k_sg2 import srd
from k_repack2 import Repack2, NTASK
import math, struct, re

def f32(x): return "0x%08x" % struct.unpack('<I', struct.pack('<f', x))[0]

def gen_attn(name, exp=''):
    k = Kernel(name)
    THR = 8.0
    QA = 131072
    MF = "v_mfma_f32_16x16x32_bf16"
    ONES = 'adds' not in exp
    RP = 'norp' not in exp
    m_ = re.search(r'sp(\d+)', exp); SPL = int(m_.group(1)) if m_ else (15 if ONES else 25)
    LEAD = 5
    S_WQ, S_XN, S_KV, S_C = 8, 12, 16, 20
    sWS, sQp, sMask, sForce, sTmp2 = 24, 26, 28, 30, 32
    (sH, sP, sWV, sW4, sG, sT, sT2, sK0, sR0, sFirst, sPend, sIt, sNB, sKVb, sLg, sRA, sCo, sWo, sXo, sNBg, sJ, sDk, sDv, sH3) = range(34, 58)
    sDM = 58
    sPtr = 66
    sRS = 74
    sRp, sVw, sTask, sKi, sLst, sQo = 84, 85, 86, 87, 88, 89
    sRet = 90
    vLane, vL16, vD, vMax, vT = 1, 2, 3, 4, 5
    vL, vLB, vM, vAl = 14, 16, 18, 20
    vKa, vVa, vWd, vWd2 = 22, 26, 30, 31
    vQ, vS, vP, vN, vOne, vF, vO = 32, 64, 96, 112, 120, 128, 160
    vLa = vO + 64
    NO = 72 if ONES else 64
    vR = 232
    nv = 240
    st_ = Stamps(k, 'stamp' in exp, base=92)
    done = k.newlabel("done")
    k(f"s_cmp_ge_u32 s2, 256")
    k(f"s_cbranch_scc1 {done}")
    st_.stamp(True); st_.stamp()
    k(f"s_load_dwordx2 {s(sWS,2)}, s[0:1], 96")
    k(f"s_load_dwordx2 {s(sQp,2)}, s[0:1], 16")
    for i, off in enumerate((40, 72, 56, 64)):
        k(f"s_load_dwordx2 {s(sPtr+2*i,2)}, s[0:1], {off}")
    k(f"v_lshrrev_b32 {v(vT)}, 6, v0")
    k(f"v_and_b32 {v(vLane)}, 63, v0")
    k(f"v_readfirstlane_b32 {s(sWV)}, {v(vT)}")
    k(f"s_and_b32 {s(sH)}, s2, 7")
    k(f"s_lshl_b32 {s(sH)}, {s(sH)}, 2")
    k(f"s_lshr_b32 {s(sT)}, s2, 3")
    k(f"s_and_b32 {s(sT2)}, {s(sT)}, 3")
    k(f"s_add_u32 {s(sH)}, {s(sH)}, {s(sT2)}")
    k(f"s_lshr_b32 {s(sP)}, {s(sT)}, 2")
    k(f"s_and_b32 {s(sW4)}, {s(sWV)}, 3")
    k(f"s_lshr_b32 {s(sG)}, {s(sWV)}, 2")
    k(f"v_lshlrev_b32 {v(vL16)}, 4, {v(vLane)}")
    k(f"s_sub_u32 {s(sRA)}, 15, {s(sP)}")
    k(f"s_lshl_b32 {s(sRA)}, {s(sRA)}, 7")
    k(f"s_lshl_b32 {s(sT)}, {s(sW4)}, 5")
    k(f"s_add_u32 {s(sRA)}, {s(sRA)}, {s(sT)}")
    k(f"s_lshl_b32 {s(sR0)}, {s(sP)}, 7")
    k(f"s_add_u32 {s(sR0)}, {s(sR0)}, {s(sT)}")
    k(f"s_lshl_b32 {s(sNB)}, {s(sP)}, 1")
    k(f"s_add_u32 {s(sNB)}, {s(sNB)}, 2")
    k(f"s_cmp_eq_u32 {s(sG)}, 0")
    k(f"s_cselect_b32 {s(sR0)}, {s(sRA)}, {s(sR0)}")
    k(f"s_cselect_b32 {s(sNBg)}, 99, {s(sNB)}")
    k(f"s_sub_u32 {s(sJ)}, 18, {s(sNB)}")
    k(f"s_lshl_b32 {s(sJ)}, {s(sJ)}, 14")
    k(f"s_lshl_b32 {s(sLg)}, {s(sG)}, 16")
    k(f"v_lshrrev_b32 {v(vT)}, 4, {v(vLane)}")
    k(f"s_and_b32 {s(sT)}, {s(sWV)}, 1")
    k(f"s_lshl_b32 {s(sT)}, {s(sT)}, 2")
    k(f"v_or_b32 {v(vT+1)}, {s(sT)}, {v(vT)}")
    k(f"v_bfe_u32 {v(vT+2)}, {v(vLane)}, 1, 3")
    k(f"v_xor_b32 {v(vT+1)}, {v(vT+1)}, {v(vT+2)}")
    k(f"v_lshlrev_b32 {v(vT)}, 13, {v(vT)}")
    k(f"v_lshl_add_u32 {v(vT)}, {v(vT+1)}, 5, {v(vT)}")
    k(f"v_and_b32 {v(vT+1)}, 1, {v(vLane)}")
    k(f"v_lshl_add_u32 {v(vWd)}, {v(vT+1)}, 4, {v(vT)}")
    k(f"v_add_u32 {v(vWd2)}, {32768-1024}, {v(vWd)}")
    k(f"s_lshl_b32 {s(sWo)}, {s(sWV)}, 16")
    k(f"s_lshl_b32 {s(sT)}, {s(sH)}, 8")
    k(f"s_add_u32 {s(sWo)}, {s(sWo)}, {s(sT)}")
    k(f"s_lshr_b32 {s(sXo)}, {s(sR0)}, 4")
    k(f"s_mul_i32 {s(sXo)}, {s(sXo)}, 18432")
    k(f"v_add_u32 {v(vMax)}, 18432, {v(vL16)}")
    k(f"s_lshl_b32 {s(sKVb)}, {s(sH)}, 19")
    k(f"s_lshl_b32 {s(sT)}, {s(sW4)}, 12")
    k(f"s_add_u32 {s(sKVb)}, {s(sKVb)}, {s(sT)}")
    k(f"s_add_u32 {s(sLg)}, {s(sLg)}, {s(sT)}")
    k(f"s_lshl_b32 {s(sCo)}, {s(sWV)}, 11")
    k(f"s_waitcnt lgkmcnt(0)")
    srd(k, S_WQ, sQp, 0, 576 * 8192)
    srd(k, S_XN, sWS, WS_XNF, 2048 * 1152)

    CH = [16384, 32768, 49152, 81920, 98304, 114688, 131072, 147456, 16384]
    vm = []
    def vm_need(tags):
        idx = max((i for i, x in enumerate(vm) if x in tags), default=-1)
        if idx >= 0:
            k(f"s_waitcnt vmcnt({len(vm)-1-idx})")
            del vm[:idx + 1]
    def dma_wq(c):
        k(f"s_add_u32 m0, {s(sCo)}, {CH[c]}")
        k(f"buffer_load_dwordx4 {v(vWd)}, {s(S_WQ,4)}, {s(sWo)} offen lds")
        k(f"buffer_load_dwordx4 {v(vWd2)}, {s(S_WQ,4)}, {s(sWo)} offen offset:1024 lds")
        k(f"s_add_u32 {s(sWo)}, {s(sWo)}, {64*8192}")
        vm.extend([('wq', c)] * 2)
    def xr(ks, qb): return vQ + ((ks * 2 + qb) % 24) * 4
    def load_xn(c):
        for kk in range(2):
            ks = 2 * c + kk
            k(f"buffer_load_dwordx4 {v(xr(ks,0),4)}, {v(vL16)}, {s(S_XN,4)}, {s(sXo)} offen offset:{kk*1024}")
            k(f"buffer_load_dwordx4 {v(xr(ks,1),4)}, {v(vMax)}, {s(S_XN,4)}, {s(sXo)} offen offset:{kk*1024}")
        k(f"s_add_u32 {s(sXo)}, {s(sXo)}, 2048")
        vm.extend([('xn', c)] * 4)
    def dma_piece(isv, slot, so, j):
        if j == 0: k(f"s_add_u32 m0, {s(sLg)}, {isv*32768 + slot*16384}")
        k(f"buffer_load_dwordx4 {v(vL16)}, {s(S_KV,4)}, {s(so)} offen offset:{1024*j} lds")
    def adv1():
        k(f"s_add_u32 {s(sDv)}, {s(sDk)}, {WS_VT-WS_K}")
        k(f"s_add_u32 {s(sKi)}, {s(sKi)}, 1")
        k(f"s_cmp_eq_u32 {s(sKi)}, {s(sNBg)}")
        k(f"s_cselect_b32 {s(sT2)}, {s(sJ)}, 0x4000")
    def adv2():
        k(f"s_add_u32 {s(sDk)}, {s(sDk)}, {s(sT2)}")
        k(f"s_cmp_gt_u32 {s(sKi)}, 16")
        k(f"s_cselect_b32 {s(sDk)}, 0x70000000, {s(sDk)}")

    PRE = 3
    for c in range(PRE):
        dma_wq(c); load_xn(c)
    srd(k, S_KV, sWS, WS_K, 32 * MB)
    srd(k, S_C, sWS, WS_CTX, 16 * MB)
    k(f"v_lshrrev_b32 {v(vT)}, 4, {v(vLane)}")
    k(f"v_bfe_u32 {v(vT+1)}, {v(vLane)}, 2, 2")
    k(f"v_lshl_add_u32 {v(vT+2)}, {v(vT)}, 3, {v(vT+1)}")
    k(f"v_and_b32 {v(vT)}, 1, {v(vT)}")
    k(f"v_lshl_or_b32 {v(vT)}, {v(vT)}, 2, {v(vT+1)}")
    k(f"v_lshlrev_b32 {v(vT+2)}, 8, {v(vT+2)}")
    k(f"v_and_b32 {v(vT+1)}, 3, {v(vLane)}")
    k(f"v_lshl_add_u32 {v(vT+2)}, {v(vT+1)}, 3, {v(vT+2)}")
    k(f"v_add_u32 {v(vT+2)}, {CH[0]}, {v(vT+2)}")
    for db in range(8):
        k(f"v_xor_b32 {v(vT+1)}, {db}, {v(vT)}")
        k(f"v_lshl_add_u32 {v(vKa+db)}, {v(vT+1)}, 5, {v(vT+2)}")
    vA = vR
    k(f"v_and_b32 {v(vT)}, 15, {v(vLane)}")
    k(f"v_lshrrev_b32 {v(vT+1)}, 4, {v(vLane)}")
    k(f"s_lshl_b32 {s(sT)}, {s(sG)}, 16")
    k(f"v_xor_b32 {v(vT+2)}, {v(vT)}, {v(vT+1)}")
    k(f"v_lshlrev_b32 {v(vT+3)}, 8, {v(vT)}")
    k(f"v_add_u32 {v(vT+3)}, {s(sT)}, {v(vT+3)}")
    for ds in range(4):
        k(f"v_xor_b32 {v(vT+4)}, {4*ds}, {v(vT+2)}")
        k(f"v_lshl_add_u32 {v(vA+ds)}, {v(vT+4)}, 4, {v(vT+3)}")
    k(f"v_and_b32 {v(vT+2)}, 7, {v(vT+2)}")
    k(f"v_lshlrev_b32 {v(vT+3)}, 7, {v(vT)}")
    k(f"v_add_u32 {v(vT+3)}, {s(sT)}, {v(vT+3)}")
    k(f"v_add_u32 {v(vT+3)}, 32768, {v(vT+3)}")
    for hb in range(2):
        k(f"v_xor_b32 {v(vT+4)}, {4*hb}, {v(vT+2)}")
        k(f"v_lshl_add_u32 {v(vA+4+hb)}, {v(vT+4)}, 4, {v(vT+3)}")
    k(f"v_lshlrev_b32 {v(vT+1)}, 2, {v(vT+1)}")
    k(f"v_sub_u32 {v(vD)}, {v(vT)}, {v(vT+1)}")
    for j in range(4):
        k(f"v_cmp_gt_i32 {s(sDM+2*j,2)}, {j}, {v(vD)}")
    for r in (vL, vL + 1, vM, vM + 1): k(f"v_mov_b32 {v(r)}, 0")
    k(f"s_lshl_b32 {s(sLst)}, {s(sWV)}, 12"); k(f"s_add_u32 {s(sLst)}, {s(sLst)}, {QA}")
    k(f"s_lshl_b32 {s(sQo)}, s2, 15"); k(f"s_lshl_b32 {s(sT)}, {s(sW4)}, 13"); k(f"s_add_u32 {s(sQo)}, {s(sQo)}, {s(sT)}"); k(f"s_add_u32 {s(sQo)}, {s(sQo)}, {WS_QA}")
    k(f"s_mov_b32 {s(sFirst)}, 1"); k(f"s_mov_b32 {s(sPend)}, 0"); k(f"s_mov_b32 {s(sK0)}, 0"); k(f"s_mov_b32 {s(sH3)}, 0")
    k(f"s_mov_b64 {s(sForce,2)}, -1")
    k(f"s_mov_b32 {s(sIt)}, 0"); k(f"s_mov_b32 {s(sKi)}, 0"); k(f"s_mov_b32 {s(sDk)}, {s(sKVb)}")
    k(f"s_lshr_b32 {s(sRp)}, s2, 3"); k(f"s_mul_i32 {s(sT)}, {s(sRp)}, 373"); k(f"s_lshr_b32 {s(sT)}, {s(sT)}, 12"); k(f"s_mul_i32 {s(sT)}, {s(sT)}, 11")
    assert all((x * 373) >> 12 == x // 11 for x in range(33))
    k(f"s_sub_u32 {s(sRp)}, {s(sRp)}, {s(sT)}"); k(f"s_add_u32 {s(sRp)}, {s(sRp)}, 1")
    k(f"s_mov_b32 {s(sVw)}, 0")
    k(f"s_lshl_b32 {s(sTask)}, s2, 3"); k(f"s_add_u32 {s(sTask)}, {s(sTask)}, {s(sWV)}")
    pend = []
    def need(tag):
        if tag in pend:
            i = pend.index(tag)
            k(f"s_waitcnt lgkmcnt({min(15, len(pend)-1-i)})")
            del pend[:i + 1]
    def rd_wq(gi):
        kk, db = divmod(gi % 16, 8)
        b = vF + (gi % 8) * 4
        k(f"ds_read_b64_tr_b16 {v(b,2)}, {v(vKa+db)} offset:{kk*8192}")
        k(f"ds_read_b64_tr_b16 {v(b+2,2)}, {v(vKa+db)} offset:{kk*8192+1024}")
        pend.append(('w0', gi)); pend.append(('w', gi))
    vm_need([('wq', 0), ('xn', 0)])
    k("s_barrier")
    for gi in range(LEAD): rd_wq(gi)
    for c in range(9):
        for gi in range(16 * c, 16 * c + 16):
            kk, db = divmod(gi % 16, 8)
            ks = 2 * c + kk
            if gi % 16 == 15 - LEAD and c < 8:
                vm_need([('wq', c + 1), ('xn', c + 1)])
                k("s_barrier")
            need(('w', gi))
            for qb in range(2):
                acc = v(vO + (db * 2 + qb) * 4, 4)
                k(f"{MF} {acc}, {v(vF+(gi%8)*4,4)}, {v(xr(ks,qb),4)}, {acc if ks else 0}")
            if gi + LEAD < 144: rd_wq(gi + LEAD)
            g5 = (gi + LEAD) % 16
            if g5 >= 8 and (gi + LEAD) // 16 < 8:
                cc = (gi + LEAD) // 16
                k(f"v_add_u32 {v(vKa+g5-8)}, {(CH[cc+1]-CH[cc]) & 0xffffffff}, {v(vKa+g5-8)}")
            if gi % 16 == 11 and c + PRE < 9: dma_wq(c + PRE)
            if gi % 16 == 13 and c + PRE < 9: load_xn(c + PRE)
            if c == 6 and gi % 16 in (4, 6, 8, 12):
                dma_piece(0, 0, sDk, [4, 6, 8, 12].index(gi % 16)); vm.append(('k0',))
    adv1(); adv2()
    k(f"s_mov_b32 {s(sT)}, {f32(math.log2(math.e) / math.sqrt(128.0))}")
    k("s_waitcnt vmcnt(0)")
    k("s_barrier")
    for i in range(6): k(f"v_mov_b32 {v(vKa+i)}, {v(vA+i)}")
    def rd(step_par, itpar, f, do_qk, do_pv):
        hb = 0 if step_par else 1
        b = vF + (f % 8) * 4
        if f < 8:
            if not do_qk: return
            ds, kb = divmod(f, 2)
            k(f"ds_read_b128 {v(b,4)}, {v(vKa+ds)} offset:{itpar*16384 + hb*8192 + kb*4096}")
        else:
            if not do_pv: return
            k(f"ds_read_b128 {v(b,4)}, {v(vVa+hb)} offset:{(1-itpar)*16384 + (f-8)*2048}")
    for f in range(8): rd(1, 0, f, True, False)
    n = 0
    for ds in range(4):
        for qb in range(2):
            for hh in range(2):
                o = vO + ((2 * ds + hh) * 2 + qb) * 4
                for j in range(4): k(f"v_mul_f32 {v(o+j)}, {s(sT)}, {v(o+j)}")
                k(f"v_cvt_pk_bf16_f32 {v(vQ+(ds*2+qb)*4+2*hh)}, {v(o)}, {v(o+1)}")
                k(f"v_cvt_pk_bf16_f32 {v(vQ+(ds*2+qb)*4+2*hh+1)}, {v(o+2)}, {v(o+3)}")
            dma_piece(n // 4, 1 - n // 4, sDk if n < 4 else sDv, n % 4); n += 1
    for i in range(8): k(f"v_mov_b32 {v(vN+i)}, 0")
    srd(k, S_XN, sWS, 0, WS_SIZE)
    rp = Repack2(k, sPtr, sRS, S_WQ, S_XN, sLst, vLane, vT + 1, vS + 16, vOne, 124)
    st_.stamp()

    ool = []
    LS = [k.newlabel("SLOW0"), k.newlabel("SLOW1"), k.newlabel("SLOWP"), k.newlabel("RPK")]
    def xreduce(r, tmp, op):
        for sw_ in ("v_permlane16_swap_b32", "v_permlane32_swap_b32"):
            k(f"v_mov_b32 {v(tmp)}, {v(r)}")
            k(f"{sw_} {v(r)}, {v(tmp)}")
            k(f"{op} {v(r)}, {v(r)}, {v(tmp)}")
    def vmwait():
        la, lr = k.newlabel("vwalt"), k.newlabel("vwret")
        k(f"s_cmp_lg_u32 {s(sVw)}, 0")
        k(f"s_cbranch_scc1 {la}")
        k("s_waitcnt vmcnt(0)")
        k.label(lr)
        def f():
            k.label(la)
            k(f"s_mov_b32 {s(sVw)}, 0")
            k("s_waitcnt vmcnt(4)")
            k(f"s_branch {lr}")
        ool.append(f)

    def step(step_par, itpar, do_qk, do_sm, do_pv, sync, nxt, dma_carry=False, grp=1, extra_b=()):
        sw = vS + (0 if step_par else 16)
        sr = vS + (16 if step_par else 0)
        pw = vP + (8 if step_par else 0)
        pr = vP + (0 if step_par else 8)
        valu = []
        if do_sm:
            prev = []
            for qb in range(2):
                for kb in range(2):
                    for hh in range(2):
                        r0 = sr + (kb * 2 + qb) * 4 + 2 * hh
                        valu.append(f"v_exp_f32 {v(r0)}, {v(r0)}")
                        valu.append(f"v_exp_f32 {v(r0+1)}, {v(r0+1)}")
                        valu.extend(prev)
                        prev = [f"v_cvt_pk_bf16_f32 {v(pw+qb*4+kb*2+hh)}, {v(r0)}, {v(r0+1)}"]
                        if not ONES:
                            prev = [f"v_add_f32 {v(vL+qb)}, {v(vL+qb)}, {v(r0)}"] + prev + [f"v_add_f32 {v(vL+qb)}, {v(vL+qb)}, {v(r0+1)}"]
            valu.extend(prev)
        mx = []
        if do_qk:
            mx = [f"v_max3_f32 {v(vMax)}, {v(sw)}, {v(sw+1)}, {v(sw+2)}",
                  f"v_max3_f32 {v(vT)}, {v(sw+3)}, {v(sw+4)}, {v(sw+5)}",
                  f"v_max3_f32 {v(vMax)}, {v(vMax)}, {v(sw+6)}, {v(sw+7)}",
                  f"v_max3_f32 {v(vT)}, {v(vT)}, {v(sw+8)}, {v(sw+9)}",
                  f"v_max3_f32 {v(vMax)}, {v(vMax)}, {v(sw+10)}, {v(sw+11)}",
                  f"v_max3_f32 {v(vT)}, {v(vT)}, {v(sw+12)}, {v(sw+13)}",
                  f"v_max3_f32 {v(vMax)}, {v(vMax)}, {v(sw+14)}, {v(sw+15)}",
                  f"v_max_f32 {v(vMax)}, {v(vMax)}, {v(vT)}",
                  f"v_cmp_lt_f32 vcc, {f32(THR)}, {v(vMax)}"]
        G0 = (grp == 0)
        qa, qc = [], []
        if dma_carry:
            if G0:
                qa = [(lambda j=j: dma_piece(0, 1 - itpar, sDk, j)) for j in range(4)]
                qc = [(lambda j=j: dma_piece(1, itpar, sDv, j)) for j in range(4)]
            else:
                qa = [(lambda j=j: dma_piece(1, itpar, sDv, j)) for j in range(4)]
        if sync:
            qa = [adv1, adv2]
            if not G0: qc = [(lambda j=j: dma_piece(0, itpar, sDk, j)) for j in range(4)]
        def maskpre():
            k(f"s_cmp_eq_u32 {s(sK0)}, {s(sR0)}")
            k(f"s_cselect_b64 {s(sMask,2)}, -1, {s(sForce,2)}")
        def maskpre2():
            if step_par == 0:
                k(f"s_add_u32 {s(sIt)}, {s(sIt)}, 1")
                if not G0:
                    k(f"s_cmp_eq_u32 {s(sIt)}, {s(sNBg)}")
                    k(f"s_cselect_b64 {s(sMask,2)}, -1, {s(sMask,2)}")
            k(f"s_add_u32 {s(sK0)}, {s(sK0)}, 32")
        if do_qk: qc = qc + [maskpre, maskpre2]
        if do_qk: k("s_waitcnt lgkmcnt(0)")
        for sl in range(8):
            ds, kb = divmod(sl, 2)
            if do_qk:
                for qb in range(2):
                    D_ = v(sw + (kb * 2 + qb) * 4, 4)
                    C = v(vN + qb * 4, 4) if ds == 0 else D_
                    k(f"{MF} {D_}, {v(vF+sl*4,4)}, {v(vQ+(ds*2+qb)*4,4)}, {C}")
                if sl == 0: k("s_setprio 2")
                if sl == 7: k("s_setprio 0")
            rd(step_par, itpar, 8 + sl, do_qk, do_pv)
            if qa and sl % 2 == 1: qa.pop(0)()
        while qa: qa.pop(0)()
        for x in valu[:SPL]: k(x)
        for x in extra_b: k(x)
        if sync and not G0:
            vmwait()
            k("s_waitcnt lgkmcnt(0)")
            k("s_barrier")
        elif do_pv:
            k("s_waitcnt lgkmcnt(0)")
        if do_pv and ONES:
            for qb in range(2):
                acc = v(vLa + qb * 4, 4)
                k(f"{MF} {acc}, {v(vOne,4)}, {v(pr+qb*4,4)}, {acc}")
            k("s_setprio 2")
        for sl in range(8, 16):
            if do_pv:
                for qb in range(2):
                    acc = v(vO + ((sl - 8) * 2 + qb) * 4, 4)
                    k(f"{MF} {acc}, {v(vF+(sl-8)*4,4)}, {v(pr+qb*4,4)}, {acc}")
                if sl == 8 and not ONES: k("s_setprio 2")
                if sl == 15: k("s_setprio 0")
            if nxt and not (sync and G0): rd(nxt[0], nxt[1], sl - 8, nxt[2], nxt[3])
            if qc: qc.pop(0)()
        while qc: qc.pop(0)()
        if sync and G0:
            vmwait()
            k("s_barrier")
            for f in range(8): rd(nxt[0], nxt[1], f, nxt[2], nxt[3])
        for x in valu[SPL:] + mx: k(x)
        if 'noend' in exp: return
        ls, lsr = k.newlabel("slow"), k.newlabel("slowret")
        if do_qk:
            k(f"s_or_b64 {s(sTmp2,2)}, vcc, {s(sMask,2)}")
        else:
            k(f"s_or_b64 {s(sTmp2,2)}, {s(sForce,2)}, {s(sForce,2)}")
        k(f"s_cbranch_scc1 {ls}")
        k.label(lsr)
        tgt = (LS[step_par] if do_qk else LS[2])
        def stub(ls=ls, lsr=lsr, tgt=tgt):
            k.label(ls)
            k(f"s_call_b64 {s(sRet,2)}, {tgt}")
            k(f"s_branch {lsr}")
        ool.append(stub)
        if step_par == 1 and dma_carry and RP:
            l1, l1r = k.newlabel("rps"), k.newlabel("rpret")
            k(f"s_sub_u32 {s(sT)}, {s(sIt)}, {s(sRp)}")
            k(f"s_cmp_lt_u32 {s(sT)}, 6")
            k(f"s_cbranch_scc1 {l1}")
            k.label(l1r)
            def stub2(l1=l1, l1r=l1r):
                k.label(l1)
                k(f"s_call_b64 {s(sRet,2)}, {LS[3]}")
                k(f"s_branch {l1r}")
            ool.append(stub2)

    def slow_routine(step_par, do_qk, do_sm, do_pv):
        sw = vS + (0 if step_par else 16)
        k.label(LS[step_par] if do_qk else LS[2])
        k("s_nop 7")
        k(f"s_mov_b64 {s(sForce,2)}, 0")
        l1 = k.newlabel("np")
        k(f"s_cmp_eq_u32 {s(sPend)}, 0")
        k(f"s_cbranch_scc1 {l1}")
        for i in range(NO): k(f"v_mul_f32 {v(vO+i)}, {v(vO+i)}, {v(vAl+(i//4)%2)}")
        k(f"s_mov_b32 {s(sPend)}, 0")
        k.label(l1)
        if step_par == 1 and do_sm:
            l2 = k.newlabel("nh2")
            k(f"s_cmp_lg_u32 {s(sIt)}, {s(sNBg)}")
            k(f"s_cbranch_scc1 {l2}")
            if not ONES:
                for qb in range(2):
                    k(f"v_mov_b32 {v(vLB+qb)}, {v(vL+qb)}")
                    k(f"v_mov_b32 {v(vL+qb)}, 0")
            k(f"s_mov_b32 {s(sH3)}, 1")
            k(f"s_mov_b64 {s(sForce,2)}, -1")
            k.label(l2)
        if step_par == 0 and do_pv:
            l3 = k.newlabel("nh3")
            k(f"s_cmp_eq_u32 {s(sH3)}, 0")
            k(f"s_cbranch_scc1 {l3}")
            k(f"s_mov_b32 {s(sH3)}, 0")
            for qb in range(2):
                if ONES: k(f"v_rcp_f32 {v(vLB+qb)}, {v(vLa+qb*4)}")
                else:
                    xreduce(vLB + qb, vT + 1, "v_add_f32")
                    k(f"v_rcp_f32 {v(vLB+qb)}, {v(vLB+qb)}")
            k(f"s_lshl_b32 {s(sT)}, {s(sP)}, 7")
            k(f"s_lshl_b32 {s(sCo)}, {s(sW4)}, 5")
            k(f"s_add_u32 {s(sT)}, {s(sT)}, {s(sCo)}")
            store_ctx(sT, range(4), vLB)
            for i in range(NO): k(f"v_mov_b32 {v(vO+i)}, 0")
            k.label(l3)
        if do_qk:
            l4, l4b, l5 = k.newlabel("nm"), k.newlabel("allm"), k.newlabel("nr")
            k(f"s_sub_u32 {s(sT)}, {s(sK0)}, 32")
            k(f"s_cmp_lt_u32 {s(sT)}, {s(sR0)}")
            k(f"s_cbranch_scc1 {l4}")
            k(f"v_mov_b32 {v(vT+2)}, 0xff800000")
            k(f"s_cmp_gt_u32 {s(sT)}, {s(sR0)}")
            k(f"s_cbranch_scc1 {l4b}")
            for j in range(4):
                k(f"v_cndmask_b32 {v(sw+j)}, {v(sw+j)}, {v(vT+2)}, {s(sDM+2*j,2)}")
                k(f"v_cndmask_b32 {v(sw+12+j)}, {v(sw+12+j)}, {v(vT+2)}, {s(sDM+2*j,2)}")
                k(f"v_mov_b32 {v(sw+8+j)}, {v(vT+2)}")
            k(f"s_branch {l4}")
            k.label(l4b)
            for j in range(16): k(f"v_mov_b32 {v(sw+j)}, {v(vT+2)}")
            k.label(l4)
            for qb in range(2):
                a0, a1 = sw + qb * 4, sw + (2 + qb) * 4
                k(f"v_max3_f32 {v(vT+3+qb)}, {v(a0)}, {v(a0+1)}, {v(a0+2)}")
                k(f"v_max3_f32 {v(vT+3+qb)}, {v(vT+3+qb)}, {v(a0+3)}, {v(a1)}")
                k(f"v_max3_f32 {v(vT+3+qb)}, {v(vT+3+qb)}, {v(a1+1)}, {v(a1+2)}")
                k(f"v_max_f32 {v(vT+3+qb)}, {v(vT+3+qb)}, {v(a1+3)}")
            k(f"v_max_f32 {v(vMax)}, {v(vT+3)}, {v(vT+4)}")
            k(f"v_cmp_lt_f32 vcc, {f32(THR)}, {v(vMax)}")
            lf, lj, lr = k.newlabel("first"), k.newlabel("join"), k.newlabel("resc")
            k(f"s_cmp_lg_u32 {s(sFirst)}, 0")
            k(f"s_cbranch_scc1 {lr}")
            k(f"s_cbranch_vccz {l5}")
            k.label(lr)
            for qb in range(2): xreduce(vT + 3 + qb, vT + 1, "v_max_f32")
            k(f"s_cmp_lg_u32 {s(sFirst)}, 0")
            k(f"s_cbranch_scc1 {lf}")
            for qb in range(2):
                k(f"v_max_f32 {v(vT+3+qb)}, 0, {v(vT+3+qb)}")
                k(f"v_sub_f32 {v(vAl+qb)}, 0, {v(vT+3+qb)}")
                k(f"v_exp_f32 {v(vAl+qb)}, {v(vAl+qb)}")
                if not ONES: k(f"v_mul_f32 {v(vL+qb)}, {v(vL+qb)}, {v(vAl+qb)}")
            k(f"s_mov_b32 {s(sPend)}, 1")
            k(f"s_mov_b64 {s(sForce,2)}, -1")
            k(f"s_branch {lj}")
            k.label(lf)
            k(f"s_mov_b32 {s(sFirst)}, 0")
            for qb in range(2):
                k(f"v_cmp_eq_f32 vcc, 0xff800000, {v(vT+3+qb)}")
                k(f"v_cndmask_b32 {v(vT+3+qb)}, {v(vT+3+qb)}, 0, vcc")
            k.label(lj)
            for qb in range(2):
                k(f"v_add_f32 {v(vM+qb)}, {v(vM+qb)}, {v(vT+3+qb)}")
                for kb in range(2):
                    for j in range(4):
                        r = sw + (kb * 2 + qb) * 4 + j
                        k(f"v_sub_f32 {v(r)}, {v(r)}, {v(vT+3+qb)}")
                for j in range(4): k(f"v_sub_f32 {v(vN+qb*4+j)}, 0, {v(vM+qb)}")
            k.label(l5)
            l7 = k.newlabel("ninf")
            k(f"s_cmp_le_u32 {s(sK0)}, {s(sR0)}")
            k(f"s_cbranch_scc1 {l7}")
            for r in range(8): k(f"v_mov_b32 {v(vN+r)}, 0xff800000")
            k.label(l7)
        if step_par == 0 and do_qk:
            l6 = k.newlabel("nh1")
            k(f"s_cmp_lg_u32 {s(sIt)}, {s(sNBg)}")
            k(f"s_cbranch_scc1 {l6}")
            k(f"s_add_u32 {s(sT)}, {s(sQo)}, 4096")
            for i in range(8):
                k(f"buffer_load_dwordx4 {v(vQ+4*i,4)}, {v(vL16)}, {s(S_XN,4)}, {s(sQo if i < 4 else sT)} offen offset:{1024*(i%4)} sc1")
            for r in range(8): k(f"v_mov_b32 {v(vN+r)}, 0")
            k(f"v_mov_b32 {v(vM)}, 0"); k(f"v_mov_b32 {v(vM+1)}, 0")
            k(f"s_mov_b32 {s(sFirst)}, 1")
            k(f"s_mov_b64 {s(sForce,2)}, -1")
            k(f"s_mov_b32 {s(sR0)}, {s(sRA)}")
            k(f"s_movk_i32 {s(sK0)}, {17*64}")
            k("s_waitcnt vmcnt(0)")
            k.label(l6)
        k("s_nop 1")
        k(f"s_setpc_b64 {s(sRet,2)}")

    def rp_routine():
        k.label(LS[3])
        l9, lsk, l8 = k.newlabel("rpfin"), k.newlabel("rpskip"), k.newlabel("rpend")
        k(f"s_bitcmp1_b32 {s(sT)}, 0")
        k(f"s_cbranch_scc1 {l9}")
        k(f"s_cmp_ge_u32 {s(sTask)}, {NTASK}")
        k(f"s_cbranch_scc1 {lsk}")
        rp.phase1(sTask)
        k(f"s_mov_b32 {s(sVw)}, 4")
        k(f"s_setpc_b64 {s(sRet,2)}")
        k.label(lsk)
        k(f"s_mov_b32 {s(sRp)}, 99")
        k(f"s_setpc_b64 {s(sRet,2)}")
        k.label(l9)
        k("s_waitcnt vmcnt(8)")
        rp.phase2()
        k(f"s_add_u32 {s(sTask)}, {s(sTask)}, 2048")
        k(f"s_mov_b32 {s(sVw)}, 4")
        k("s_nop 1")
        k(f"s_setpc_b64 {s(sRet,2)}")

    def store_ctx(row_sgpr, dss, vscale):
        k(f"s_lshl_b32 {s(sCo)}, {s(row_sgpr)}, 13")
        k(f"s_lshl_b32 {s(sXo)}, {s(sH)}, 12")
        k(f"s_add_u32 {s(sCo)}, {s(sCo)}, {s(sXo)}")
        k(f"s_add_u32 {s(sXo)}, {s(sCo)}, {128*1024}")
        for ds in dss:
            for qb in range(2):
                o0, o1 = vO + ((2 * ds) * 2 + qb) * 4, vO + ((2 * ds + 1) * 2 + qb) * 4
                for j in range(4):
                    k(f"v_mul_f32 {v(o0+j)}, {v(o0+j)}, {v(vscale+qb)}")
                    k(f"v_mul_f32 {v(o1+j)}, {v(o1+j)}, {v(vscale+qb)}")
                k(f"v_cvt_pk_bf16_f32 {v(o0)}, {v(o0)}, {v(o0+1)}")
                k(f"v_cvt_pk_bf16_f32 {v(o0+1)}, {v(o0+2)}, {v(o0+3)}")
                k(f"v_cvt_pk_bf16_f32 {v(o0+2)}, {v(o1)}, {v(o1+1)}")
                k(f"v_cvt_pk_bf16_f32 {v(o0+3)}, {v(o1+2)}, {v(o1+3)}")
                k(f"buffer_store_dwordx4 {v(o0,4)}, {v(vL16)}, {s(S_C,4)}, {s(sCo if qb == 0 else sXo)} offen offset:{ds*1024}")

    lgrp1, ljoin = k.newlabel("grp1"), k.newlabel("grpjoin")
    k(f"s_cmp_lg_u32 {s(sG)}, 0")
    k(f"s_cbranch_scc1 {lgrp1}")
    zero = [f"v_mov_b32 {v(vO+i)}, 0" for i in range(NO)] + [f"v_mov_b32 {v(vOne+i)}, 0x3f803f80" for i in range(4)]
    for grp in (0, 1):
        if grp == 1: k.label(lgrp1)
        else:
            k(f"s_add_u32 {s(sT)}, {s(sQo)}, 4096")
            for i in range(8):
                k(f"buffer_store_dwordx4 {v(vQ+4*i,4)}, {v(vL16)}, {s(S_XN,4)}, {s(sQo if i < 4 else sT)} offen offset:{1024*(i%4)}")
        step(1, 0, True, False, False, False, (0, 0, True, False), grp=grp, extra_b=zero)
        step(0, 0, True, True, False, True, (1, 1, True, True), grp=grp)
        loop = k.newlabel("loop")
        k.label(loop)
        for itpar in (1, 0):
            step(1, itpar, True, True, True, False, (0, itpar, True, True), dma_carry=True, grp=grp)
            step(0, itpar, True, True, True, True, (1, 1 - itpar, True, True), grp=grp)
        k(f"s_cmp_lt_u32 {s(sIt)}, 17")
        k(f"s_cbranch_scc1 {loop}")
        k.check_loop(loop)
        k("s_waitcnt lgkmcnt(0)")
        step(1, 1, False, True, True, False, (0, 1, False, True), grp=grp)
        step(0, 1, False, False, True, False, None, grp=grp)
        if grp == 0: k(f"s_branch {ljoin}")
    k.label(ljoin)
    k("s_nop 7")
    k("s_waitcnt vmcnt(0)")
    k("s_barrier")
    for qb in range(2):
        if ONES: k(f"v_mov_b32 {v(vL+qb)}, {v(vLa+qb*4)}")
        else: xreduce(vL + qb, vT + 1, "v_add_f32")
        k(f"v_cmp_eq_f32 vcc, 0, {v(vL+qb)}")
        k(f"v_mov_b32 {v(vT+1)}, {f32(-1e30)}")
        k(f"v_cndmask_b32 {v(vLB+qb)}, {v(vM+qb)}, {v(vT+1)}, vcc")
    k(f"s_mul_i32 {s(sT)}, {s(sWV)}, 9216")
    k(f"v_add_u32 {v(vT)}, {s(sT)}, {v(vL16)}")
    k(f"s_xor_b32 {s(sT2)}, {s(sWV)}, 4")
    k(f"s_mul_i32 {s(sT2)}, {s(sT2)}, 9216")
    k(f"v_add_u32 {v(vT+1)}, {s(sT2)}, {v(vL16)}")
    k(f"ds_write_b128 {v(vT)}, {v(vL,4)} offset:8192")
    lg1, lgj = k.newlabel("mg1"), k.newlabel("mgj")
    k(f"s_cmp_lg_u32 {s(sG)}, 0")
    k(f"s_cbranch_scc1 {lg1}")
    def merge(own, other):
        for i in range(8):
            k(f"ds_write_b128 {v(vT)}, {v(vO+other*32+4*i,4)} offset:{1024*i}")
        k("s_waitcnt lgkmcnt(0)")
        k("s_barrier")
        X = vP
        k(f"ds_read_b128 {v(X,4)}, {v(vT+1)} offset:8192")
        for i in range(8):
            k(f"ds_read_b128 {v(vS+4*i,4)}, {v(vT+1)} offset:{1024*i}")
        k("s_waitcnt lgkmcnt(8)")
        for qb in range(2):
            k(f"v_max_f32 {v(vM+qb)}, {v(vLB+qb)}, {v(X+2+qb)}")
            k(f"v_sub_f32 {v(vLB+qb)}, {v(vLB+qb)}, {v(vM+qb)}")
            k(f"v_sub_f32 {v(X+2+qb)}, {v(X+2+qb)}, {v(vM+qb)}")
            k(f"v_exp_f32 {v(vLB+qb)}, {v(vLB+qb)}")
            k(f"v_exp_f32 {v(X+2+qb)}, {v(X+2+qb)}")
            k(f"v_mul_f32 {v(vL+qb)}, {v(vL+qb)}, {v(vLB+qb)}")
            k(f"v_fmac_f32 {v(vL+qb)}, {v(X+qb)}, {v(X+2+qb)}")
            k(f"v_rcp_f32 {v(vL+qb)}, {v(vL+qb)}")
        k("s_waitcnt lgkmcnt(0)")
        for i in range(32):
            qb = (i // 4) % 2
            k(f"v_mul_f32 {v(vO+own*32+i)}, {v(vO+own*32+i)}, {v(vLB+qb)}")
            k(f"v_fmac_f32 {v(vO+own*32+i)}, {v(vS+i)}, {v(X+2+qb)}")
        store_ctx(sRA, (2 * own, 2 * own + 1), vL)
    merge(0, 1)
    k(f"s_branch {lgj}")
    k.label(lg1)
    merge(1, 0)
    k.label(lgj)
    st_.dump(sWS, sWV, 200 * MB, vT, srd_base=60)
    k.label(done)
    k("s_endpgm")
    i = 0
    while i < len(ool):
        ool[i](); i += 1
    if 'noend' not in exp:
        slow_routine(0, True, True, True); slow_routine(1, True, True, True); slow_routine(1, False, False, False)
        if RP: rp_routine()
    return k, nv, 163840, 0
```

```python
from asmlib import *
from layout import *
from k_sg2 import srd

def gen_ffnup(name, exp=''):
    k = Kernel(name)
    NKS = 18
    NSL = 4
    STG = 34 * 1024
    S_X, S_W, S_A, S_C = 8, 12, 16, 20
    sWS = 24
    sMB, sFT, sWV, sRG, sCG, sT, sT2, sXo, sWo, sWq, sL0, sLq, sAo, sAo2 = range(26, 40)
    vLane, vL16, vL4, vXr, vWr, vT = 1, 2, 3, 4, 5, 6
    vPr = 12
    vCS = 28
    vX = 64
    vW = 96
    vAcc = 112
    vE = 64
    done = k.newlabel("done")
    k(f"s_cmp_ge_u32 s2, 256")
    k(f"s_cbranch_scc1 {done}")
    st_ = Stamps(k, 'stamp' in exp)
    st_.stamp(True)
    st_.stamp()
    k(f"s_load_dwordx2 {s(sWS,2)}, s[0:1], 96")
    k(f"v_lshrrev_b32 {v(vT)}, 6, v0")
    k(f"v_and_b32 {v(vLane)}, 63, v0")
    k(f"v_readfirstlane_b32 {s(sWV)}, {v(vT)}")
    k(f"s_and_b32 {s(sFT)}, s2, 7")
    k(f"s_lshl_b32 {s(sFT)}, {s(sFT)}, 2")
    k(f"s_lshr_b32 {s(sT)}, s2, 3")
    k(f"s_and_b32 {s(sT2)}, {s(sT)}, 3")
    k(f"s_add_u32 {s(sFT)}, {s(sFT)}, {s(sT2)}")
    k(f"s_lshr_b32 {s(sMB)}, {s(sT)}, 2")
    k(f"s_and_b32 {s(sRG)}, {s(sWV)}, 3")
    k(f"s_lshr_b32 {s(sCG)}, {s(sWV)}, 2")
    k(f"v_lshlrev_b32 {v(vL16)}, 4, {v(vLane)}")
    k(f"v_lshlrev_b32 {v(vL4)}, 2, {v(vLane)}")
    k(f"s_lshl_b32 {s(sT)}, {s(sRG)}, 12")
    k(f"v_add_u32 {v(vXr)}, {s(sT)}, {v(vL16)}")
    k(f"s_mul_i32 {s(sT)}, {s(sCG)}, 9216")
    k(f"s_add_u32 {s(sT)}, {s(sT)}, 16384")
    k(f"v_add_u32 {v(vWr)}, {s(sT)}, {v(vL16)}")
    k(f"s_lshl_b32 {s(sXo)}, {s(sMB)}, 4")
    k(f"s_lshl_b32 {s(sT)}, {s(sWV)}, 1")
    k(f"s_add_u32 {s(sXo)}, {s(sXo)}, {s(sT)}")
    k(f"s_mul_i32 {s(sXo)}, {s(sXo)}, 18432")
    k(f"s_mul_i32 {s(sWo)}, {s(sFT)}, 18")
    k(f"s_add_u32 {s(sWq)}, {s(sWo)}, 16")
    k(f"s_add_u32 {s(sWo)}, {s(sWo)}, {s(sT)}")
    k(f"s_mul_i32 {s(sWo)}, {s(sWo)}, 18432")
    k(f"s_add_u32 {s(sWq)}, {s(sWq)}, {s(sCG)}")
    k(f"s_mul_i32 {s(sWq)}, {s(sWq)}, 18432")
    k(f"s_lshl_b32 {s(sT2)}, {s(sRG)}, 8")
    k(f"s_add_u32 {s(sWq)}, {s(sWq)}, {s(sT2)}")
    k(f"s_lshl_b32 {s(sL0)}, {s(sWV)}, 11")
    k(f"s_lshl_b32 {s(sLq)}, {s(sWV)}, 8")
    k(f"s_add_u32 {s(sLq)}, {s(sLq)}, {32*1024}")
    k(f"v_add_u32 {v(vT)}, {18432-1024}, {v(vL16)}")
    vD2 = vT
    k(f"s_waitcnt lgkmcnt(0)")
    srd(k, S_X, sWS, WS_HF, 128 * 18432)
    srd(k, S_W, sWS, WS_WGU, 576 * 18432)
    srd(k, S_A, sWS, WS_ACT, 128 * 144 * 1024)
    srd(k, S_C, sWS, WS_STAT, WS_CS - WS_STAT + 576 * 64)

    def dma(st):
        sl = st % NSL
        k(f"s_add_u32 m0, {s(sL0)}, {sl*STG}")
        k(f"buffer_load_dwordx4 {v(vL16)}, {s(S_X,4)}, {s(sXo)} offen lds")
        k(f"buffer_load_dwordx4 {v(vD2)}, {s(S_X,4)}, {s(sXo)} offen offset:1024 lds")
        k(f"s_add_u32 m0, {s(sL0)}, {sl*STG+16384}")
        k(f"s_add_u32 {s(sXo)}, {s(sXo)}, 1024")
        k(f"buffer_load_dwordx4 {v(vL16)}, {s(S_W,4)}, {s(sWo)} offen lds")
        k(f"buffer_load_dwordx4 {v(vD2)}, {s(S_W,4)}, {s(sWo)} offen offset:1024 lds")
        k(f"s_add_u32 m0, {s(sLq)}, {sl*STG}")
        k(f"s_add_u32 {s(sWo)}, {s(sWo)}, 1024")
        k(f"buffer_load_dword {v(vL4)}, {s(S_W,4)}, {s(sWq)} offen lds")
        k(f"s_add_u32 {s(sWq)}, {s(sWq)}, 1024")

    dma(0)
    k(f"v_and_b32 {v(vT+1)}, 15, {v(vLane)}")
    k(f"v_lshlrev_b32 {v(vT+1)}, 6, {v(vT+1)}")
    k(f"v_lshrrev_b32 {v(vT+2)}, 4, {v(vLane)}")
    k(f"v_lshlrev_b32 {v(vT+2)}, 4, {v(vT+2)}")
    k(f"v_add_u32 {v(vT+1)}, {v(vT+1)}, {v(vT+2)}")
    k(f"s_lshl_b32 {s(sT)}, {s(sMB)}, 14")
    k(f"s_lshl_b32 {s(sT2)}, {s(sRG)}, 12")
    k(f"s_add_u32 {s(sT)}, {s(sT)}, {s(sT2)}")
    vS = 64
    for rb in range(4):
        k(f"buffer_load_dwordx4 {v(vS+rb*8,4)}, {v(vT+1)}, {s(S_C,4)}, {s(sT)} offen offset:{rb*1024}")
    k(f"s_mul_i32 {s(sT)}, {s(sFT)}, 18")
    k(f"s_mul_i32 {s(sT2)}, {s(sCG)}, 9")
    k(f"s_add_u32 {s(sT)}, {s(sT)}, {s(sT2)}")
    k(f"s_lshl_b32 {s(sT)}, {s(sT)}, 6")
    k(f"s_add_u32 {s(sT)}, {s(sT)}, {WS_CS-WS_STAT}")
    for b in range(9):
        k(f"buffer_load_dwordx4 {v(vCS+b*4,4)}, {v(vT+2)}, {s(S_C,4)}, {s(sT)} offen offset:{b*64}")
    k(f"s_lshl_b32 {s(sAo)}, {s(sMB)}, 4")
    k(f"s_lshl_b32 {s(sT)}, {s(sRG)}, 2")
    k(f"s_add_u32 {s(sAo)}, {s(sAo)}, {s(sT)}")
    k(f"s_mul_i32 {s(sAo)}, {s(sAo)}, 144")
    k(f"s_lshl_b32 {s(sT)}, {s(sFT)}, 1")
    k(f"s_add_u32 {s(sT)}, {s(sT)}, {s(sCG)}")
    k(f"s_lshr_b32 {s(sAo2)}, {s(sT)}, 2")
    k(f"s_add_u32 {s(sAo2)}, {s(sAo2)}, 128")
    k(f"s_add_u32 {s(sAo2)}, {s(sAo2)}, {s(sAo)}")
    k(f"s_lshl_b32 {s(sAo2)}, {s(sAo2)}, 10")
    k(f"s_and_b32 {s(sT2)}, {s(sT)}, 1")
    k(f"s_lshl_b32 {s(sT2)}, {s(sT2)}, 9")
    k(f"s_add_u32 {s(sAo2)}, {s(sAo2)}, {s(sT2)}")
    k(f"s_bfe_u32 {s(sT2)}, {s(sT)}, 0x10001")
    k(f"s_lshl_b32 {s(sT2)}, {s(sT2)}, 3")
    k(f"s_add_u32 {s(sAo2)}, {s(sAo2)}, {s(sT2)}")
    k(f"s_lshl_b32 {s(sT)}, {s(sT)}, 1")
    k(f"s_add_u32 {s(sAo)}, {s(sAo)}, {s(sT)}")
    k(f"s_lshl_b32 {s(sAo)}, {s(sAo)}, 10")
    k(f"s_waitcnt vmcnt(9)")
    k(f"s_mov_b32 {s(sT)}, 0x3ae38e39")
    k(f"s_mov_b32 {s(sT2)}, 0xbfb8aa3b")
    for rb in range(4):
        b = vS + rb * 8
        k(f"v_add_f32 {v(b)}, {v(b)}, {v(b+2)}")
        k(f"v_add_f32 {v(b+1)}, {v(b+1)}, {v(b+3)}")
        for sw in ("v_permlane16_swap_b32", "v_permlane32_swap_b32"):
            k(f"v_mov_b32 {v(b+2)}, {v(b)}")
            k(f"v_mov_b32 {v(b+3)}, {v(b+1)}")
            k(f"{sw} {v(b)}, {v(b+2)}")
            k(f"{sw} {v(b+1)}, {v(b+3)}")
            k(f"v_add_f32 {v(b)}, {v(b)}, {v(b+2)}")
            k(f"v_add_f32 {v(b+1)}, {v(b+1)}, {v(b+3)}")
        k(f"v_mul_f32 {v(b)}, {s(sT)}, {v(b)}")
        k(f"v_mul_f32 {v(b+1)}, {s(sT)}, {v(b+1)}")
        k(f"v_fma_f32 {v(b+1)}, -{v(b)}, {v(b)}, {v(b+1)}")
        k(f"v_max_f32 {v(b+1)}, 0, {v(b+1)}")
        k(f"v_add_f32 {v(b+1)}, 0x3727c5ac, {v(b+1)}")
        k(f"v_rcp_f32 {v(vPr+4*rb+1)}, {v(b+1)}")
        k(f"v_rsq_f32 {v(b+2)}, {v(b+1)}")
        k(f"v_sub_f32 {v(vPr+4*rb)}, 0, {v(b)}")
        k(f"v_mov_b32 {v(vPr+4*rb+3)}, 1.0")
        k(f"v_mul_f32 {v(vPr+4*rb+2)}, {s(sT2)}, {v(b+2)}")
    k("s_barrier")
    st_.stamp()
    k("s_waitcnt lgkmcnt(0)")
    def rdX(st, rb):
        k(f"ds_read_b128 {v(vX+(st%2)*16+rb*4,4)}, {v(vXr)} offset:{(st%NSL)*STG % 65536 + rb*1024}") if (st % NSL) * STG + 16384 < 65536 else None
    vXr2, vWr2 = vT + 3, vT + 4
    k(f"v_add_u32 {v(vXr2)}, {2*STG}, {v(vXr)}")
    k(f"v_add_u32 {v(vWr2)}, {2*STG}, {v(vWr)}")
    def rdx(st, rb):
        sl = st % NSL
        base = vXr if sl < 2 else vXr2
        k(f"ds_read_b128 {v(vX+(st%2)*16+rb*4,4)}, {v(base)} offset:{(sl%2)*STG + rb*1024}")
    def rdw(gidx):
        st, cb = divmod(gidx, 9)
        if st >= NKS: return False
        sl = st % NSL
        base = vWr if sl < 2 else vWr2
        k(f"ds_read_b128 {v(vW+(gidx%4)*4,4)}, {v(base)} offset:{(sl%2)*STG + cb*1024}")
        return True
    pend = []
    def issue_x(st, rb): rdx(st, rb); pend.append(('x', st, rb))
    def issue_w(g):
        if rdw(g): pend.append(('w', g))
    def need(tag):
        if tag in pend:
            i = pend.index(tag)
            n = len(pend) - 1 - i
            k(f"s_waitcnt lgkmcnt({n})")
            del pend[:i + 1]
    for rb in range(4): issue_x(0, rb)
    issue_w(0); issue_w(1); issue_w(2)
    SYNC_CB = 4
    for st in range(NKS):
        for cb in range(9):
            g = st * 9 + cb
            if cb == SYNC_CB and st + 1 < NKS:
                nfl = 5 if st + 2 < NKS else 0
                k(f"s_waitcnt vmcnt({nfl})")
                k("s_barrier")
                if st + 3 < NKS: dma(st + 3)
            need(('w', g))
            for rb in range(4):
                if cb == 0: need(('x', st, rb))
                acc = v(vAcc + (cb * 4 + rb) * 4, 4)
                k(f"v_mfma_f32_16x16x32_bf16 {acc}, {v(vW+(g%4)*4,4)}, {v(vX+(st%2)*16+rb*4,4)}, {acc if st else 0}")
                if rb == 0: issue_w(g + 3)
                if st == 0 and rb == 3 and cb == 0: dma(1)
                if st == 0 and rb == 3 and cb == 2: dma(2)
                if cb > SYNC_CB and cb - SYNC_CB - 1 < 4 and rb == 2 and st + 1 < NKS:
                    issue_x(st + 1, cb - SYNC_CB - 1)
    st_.stamp()
    B0 = "op_sel:[0,0,0] op_sel_hi:[0,1,1]"
    k(f"v_cmp_gt_u32 vcc, 32, {v(vLane)}")
    k(f"v_mov_b32 {v(vT+1)}, 0x7f000000")
    k(f"v_cndmask_b32 {v(vT+1)}, {v(vT+1)}, {v(vL16)}, vcc")
    def act4(G, U, E, P0, P1, out):
        for h in (0, 2): k(f"v_pk_mul_f32 {v(E+h,2)}, {P1}, {v(G+h,2)} op_sel:[0,0] op_sel_hi:[0,1]")
        for j in range(4): k(f"v_exp_f32 {v(E+j)}, {v(E+j)}")
        for h in (0, 2): k(f"v_pk_mul_f32 {v(G+h,2)}, {v(G+h,2)}, {v(U+h,2)}")
        for h in (0, 2): k(f"v_pk_add_f32 {v(E+h,2)}, {P1}, {v(E+h,2)} op_sel:[1,0] op_sel_hi:[1,1]")
        for j in range(4): k(f"v_rcp_f32 {v(E+j)}, {v(E+j)}")
        for h in (0, 2): k(f"v_pk_mul_f32 {v(G+h,2)}, {P0}, {v(G+h,2)} op_sel:[1,0] op_sel_hi:[1,1]")
        for h in (0, 2): k(f"v_pk_mul_f32 {v(G+h,2)}, {v(G+h,2)}, {v(E+h,2)}")
        for h in (0, 2): k(f"v_cvt_pk_bf16_f32 {v(out+h//2)}, {v(G+h)}, {v(G+h+1)}")
    n = 0
    for rb in range(4):
        P0, P1 = v(vPr+4*rb, 2), v(vPr+4*rb+2, 2)
        ob = vE + 16 + (rb % 2) * 12
        for b in range(4):
            G, U = vAcc + (b * 4 + rb) * 4, vAcc + ((4 + b) * 4 + rb) * 4
            for h in (0, 2):
                k(f"v_pk_fma_f32 {v(G+h,2)}, {P0}, {v(vCS+b*4+h,2)}, {v(G+h,2)} {B0}")
                k(f"v_pk_fma_f32 {v(U+h,2)}, {P0}, {v(vCS+(4+b)*4+h,2)}, {v(U+h,2)} {B0}")
            act4(G, U, vE + (n % 3) * 4, P0, P1, ob + 2 * b); n += 1
            if b % 2 == 1:
                k(f"buffer_store_dwordx4 {v(ob+2*b-2,4)}, {v(vL16)}, {s(S_A,4)}, {s(sAo)} offen offset:{1024*(b//2)}")
        G = vAcc + (32 + rb) * 4; U = vE + 12
        for h in (0, 2):
            k(f"v_pk_fma_f32 {v(G+h,2)}, {P0}, {v(vCS+32+h,2)}, {v(G+h,2)} {B0}")
        for j in range(4): k(f"v_mov_b32 {v(U+j)}, {v(G+j)}")
        for j in range(4): k(f"v_permlane32_swap_b32 {v(G+j)}, {v(U+j)}")
        act4(G, U, vE + (n % 3) * 4, P0, P1, ob + 8); n += 1
        k(f"buffer_store_dwordx2 {v(ob+8,2)}, {v(vT+1)}, {s(S_A,4)}, {s(sAo2)} offen")
        if rb < 3:
            k(f"s_add_u32 {s(sAo)}, {s(sAo)}, {144*1024}")
            k(f"s_add_u32 {s(sAo2)}, {s(sAo2)}, {144*1024}")
    st_.stamp()
    st_.dump(sWS, sWV, 200 * MB, vT)
    k.label(done)
    k("s_endpgm")
    return k, 256, NSL * STG, 0
```

```python
from asmlib import *
from layout import *
from k_sg2 import srd
NT_A, NT_B, NT_C = 1152, 1296, 1296
NTASK = NT_A + NT_B + 2 * NT_C

class Repack2:
    def __init__(self, k, sPtr, sS, S_SRC, S_DST, sLds, vLane, vT, vOut, vOne, vX):
        self.__dict__.update(locals())
    def phase1(self, sTask):
        k, sS, vT, vLane = self.k, self.sS, self.vT, self.vLane
        sT, sKs, sR, sSrc, sStr, sDst, sTS, sGS, sBS, sCS = range(sS, sS + 10)
        lC, lJ, lB, lAB = k.newlabel("uC"), k.newlabel("uJ"), k.newlabel("uB"), k.newlabel("uAB")
        k(f"s_cmp_ge_u32 {s(sTask)}, {NT_A+NT_B}")
        k(f"s_cbranch_scc1 {lC}")
        k(f"s_cmp_ge_u32 {s(sTask)}, {NT_A}")
        k(f"s_cselect_b32 {s(sT)}, {NT_A}, 0")
        k(f"s_cselect_b32 {s(self.S_SRC)}, {s(self.sPtr+2)}, {s(self.sPtr)}")
        k(f"s_cselect_b32 {s(self.S_SRC+1)}, {s(self.sPtr+3)}, {s(self.sPtr+1)}")
        k(f"s_cselect_b32 {s(sBS)}, 9, 8")
        k(f"s_cselect_b32 {s(sDst)}, {(WS_WDF-WS_WOF)//MB}, 0")
        k(f"s_mul_i32 {s(self.S_SRC+2)}, {s(sBS)}, {512*1152}")
        k(f"s_sub_u32 {s(sT)}, {s(sTask)}, {s(sT)}")
        k(f"s_mul_i32 {s(sKs)}, {s(sT)}, 7282")
        k(f"s_lshr_b32 {s(sKs)}, {s(sKs)}, 16")
        k(f"s_mul_i32 {s(sR)}, {s(sKs)}, 9")
        k(f"s_sub_u32 {s(sR)}, {s(sT)}, {s(sR)}")
        k(f"s_movk_i32 {s(sStr)}, 1152")
        k(f"s_lshl_b32 {s(sDst)}, {s(sDst)}, 20")
        k(f"s_add_u32 {s(sDst)}, {s(sDst)}, {WS_WOF}")
        k(f"s_mul_i32 {s(sTS)}, {s(sBS)}, {16*4608}")
        k(f"s_mul_i32 {s(sT)}, {s(sKs)}, 4608")
        k(f"s_add_u32 {s(sDst)}, {s(sDst)}, {s(sT)}")
        k(f"s_mul_i32 {s(sT)}, {s(sR)}, {s(sTS)}")
        k(f"s_cmp_eq_u32 {s(sR)}, 8")
        k(f"s_cselect_b32 {s(sT)}, 4096, {s(sT)}")
        k(f"s_add_u32 {s(sDst)}, {s(sDst)}, {s(sT)}")
        k(f"s_lshl_b32 {s(sBS)}, {s(sTS)}, 1")
        k(f"s_cmp_eq_u32 {s(sR)}, 8")
        k(f"s_cselect_b32 {s(sBS)}, {s(sBS)}, 1024")
        k(f"s_cselect_b32 {s(sTS)}, {s(sTS)}, 128")
        k(f"s_cselect_b32 {s(sGS)}, 1, 2")
        k(f"s_lshl_b32 {s(sGS)}, {s(sGS)}, 7")
        k(f"s_mov_b32 {s(sCS)}, -1")
        k(f"s_branch {lJ}")
        k.label(lC)
        k(f"s_sub_u32 {s(sT)}, {s(sTask)}, {NT_A+NT_B}")
        k(f"s_cmp_ge_u32 {s(sT)}, {NT_C}")
        k(f"s_cselect_b32 {s(sGS)}, {NT_C}, 0")
        k(f"s_cselect_b32 {s(self.S_SRC)}, {s(self.sPtr+6)}, {s(self.sPtr+4)}")
        k(f"s_cselect_b32 {s(self.S_SRC+1)}, {s(self.sPtr+7)}, {s(self.sPtr+5)}")
        k(f"s_cselect_b32 {s(sBS)}, 1, 0")
        k(f"s_mov_b32 {s(self.S_SRC+2)}, {576*9216}")
        k(f"s_sub_u32 {s(sT)}, {s(sT)}, {s(sGS)}")
        k(f"s_mul_i32 {s(sKs)}, {s(sT)}, 3641")
        k(f"s_lshr_b32 {s(sKs)}, {s(sKs)}, 18")
        k(f"s_mul_i32 {s(sR)}, {s(sKs)}, 72")
        k(f"s_sub_u32 {s(sR)}, {s(sT)}, {s(sR)}")
        k(f"s_movk_i32 {s(sStr)}, 9216")
        k(f"s_mul_i32 {s(sT)}, {s(sR)}, 144")
        k(f"s_lshl_b32 {s(sTS)}, {s(sBS)}, 6")
        k(f"s_add_u32 {s(sT)}, {s(sT)}, {s(sTS)}")
        k(f"s_sub_u32 {s(sTS)}, {s(sR)}, 64")
        k(f"s_mul_i32 {s(sTS)}, {s(sTS)}, 1152")
        k(f"s_add_u32 {s(sTS)}, {s(sTS)}, 128")
        k(f"s_lshl_b32 {s(sGS)}, {s(sBS)}, 3")
        k(f"s_cmp_ge_u32 {s(sR)}, 64")
        k(f"s_cselect_b32 {s(sT)}, {s(sTS)}, {s(sT)}")
        k(f"s_cselect_b32 {s(sGS)}, {s(sGS)}, 0")
        k(f"s_mul_i32 {s(sDst)}, {s(sT)}, 1152")
        k(f"s_add_u32 {s(sCS)}, {s(sT)}, {s(sGS)}")
        k(f"s_lshl_b32 {s(sGS)}, {s(sGS)}, 4")
        k(f"s_add_u32 {s(sDst)}, {s(sDst)}, {s(sGS)}")
        k(f"s_lshl_b32 {s(sT)}, {s(sKs)}, 10")
        k(f"s_add_u32 {s(sDst)}, {s(sDst)}, {s(sT)}")
        k(f"s_add_u32 {s(sDst)}, {s(sDst)}, {WS_WGU}")
        k(f"s_mul_i32 {s(sT)}, {s(sKs)}, 9216")
        k(f"s_add_u32 {s(sCS)}, {s(sCS)}, {s(sT)}")
        k(f"s_lshl_b32 {s(sCS)}, {s(sCS)}, 2")
        k(f"s_add_u32 {s(sCS)}, {s(sCS)}, {WS_CSP}")
        k(f"s_movk_i32 {s(sGS)}, 256")
        k(f"s_cmp_ge_u32 {s(sR)}, 64")
        k(f"s_cselect_b32 {s(sTS)}, {9*144}, 1")
        k(f"s_cselect_b32 {s(sBS)}, 18, 1")
        k(f"s_lshl_b32 {s(sTS)}, {s(sTS)}, 7")
        k(f"s_mul_i32 {s(sBS)}, {s(sBS)}, 18432")
        k.label(lJ)
        k(f"s_mov_b32 {s(self.S_SRC+3)}, 0x00020000")
        k(f"s_mul_i32 {s(sSrc)}, {s(sKs)}, {s(sStr)}")
        k(f"s_lshl_b32 {s(sSrc)}, {s(sSrc)}, 5")
        k(f"s_lshl_b32 {s(sT)}, {s(sR)}, 7")
        k(f"s_add_u32 {s(sSrc)}, {s(sSrc)}, {s(sT)}")
        k(f"v_lshrrev_b32 {v(vT)}, 3, {v(vLane)}")
        k(f"v_mul_u32_u24 {v(vT)}, {s(sStr)}, {v(vT)}")
        k(f"v_and_b32 {v(vT+1)}, 7, {v(vLane)}")
        k(f"v_lshl_add_u32 {v(vT)}, {v(vT+1)}, 4, {v(vT)}")
        k(f"s_lshl_b32 {s(sT)}, {s(sStr)}, 3")
        k(f"s_sub_u32 {s(sT)}, {s(sT)}, 1024")
        k(f"s_mov_b32 m0, {s(self.sLds)}")
        for i in range(4):
            k(f"buffer_load_dwordx4 {v(vT)}, {s(self.S_SRC,4)}, {s(sSrc)} offen offset:{1024*i} lds")
            if i < 3: k(f"s_add_u32 {s(sSrc)}, {s(sSrc)}, {s(sT)}")
    def phase2(self):
        k, sS, vT, vLane, vO = self.k, self.sS, self.vT, self.vLane, self.vOut
        sT, sKs, sR, sSrc, sStr, sDst, sTS, sGS, sBS, sCS = range(sS, sS + 10)
        k(f"s_cmp_eq_u32 {s(sCS)}, -1")
        k(f"s_cselect_b32 {s(sT)}, 9, 10")
        k(f"s_cselect_b32 {s(sSrc)}, 4, 1")
        k(f"s_lshl_b32 {s(sSrc)}, {s(sSrc)}, 9")
        k(f"v_lshrrev_b32 {v(vT)}, 4, {v(vLane)}")
        k(f"v_lshlrev_b32 {v(vT+1)}, {s(sT)}, {v(vT)}")
        k(f"v_bfe_u32 {v(vT+2)}, {v(vLane)}, 2, 2")
        k(f"v_lshl_add_u32 {v(vT+1)}, {v(vT+2)}, 7, {v(vT+1)}")
        k(f"v_and_b32 {v(vT+2)}, 3, {v(vLane)}")
        k(f"v_lshl_add_u32 {v(vT+1)}, {v(vT+2)}, 3, {v(vT+1)}")
        k(f"v_add_u32 {v(vT+1)}, {s(self.sLds)}, {v(vT+1)}")
        k(f"v_add_u32 {v(vT+2)}, {s(sSrc)}, {v(vT+1)}")
        for b in range(4):
            k(f"ds_read_b64_tr_b16 {v(vO+4*b,2)}, {v(vT+1)} offset:{32*b}")
            k(f"ds_read_b64_tr_b16 {v(vO+4*b+2,2)}, {v(vT+2)} offset:{32*b}")
        k(f"v_mul_u32_u24 {v(vT+1)}, {s(sGS)}, {v(vT)}")
        k(f"v_bfe_u32 {v(vT+2)}, {v(vLane)}, 3, 1")
        k(f"v_mul_u32_u24 {v(vT+2)}, {s(sTS)}, {v(vT+2)}")
        k(f"v_and_b32 {v(vT+3)}, 7, {v(vLane)}")
        k(f"v_lshlrev_b32 {v(vT+3)}, 4, {v(vT+3)}")
        k(f"v_add3_u32 {v(vT+1)}, {v(vT+1)}, {v(vT+2)}, {v(vT+3)}")
        k("s_waitcnt lgkmcnt(0)")
        for b in range(4):
            k(f"buffer_store_dwordx4 {v(vO+4*b,4)}, {v(vT+1)}, {s(self.S_DST,4)}, {s(sDst)} offen")
            if b < 3: k(f"s_add_u32 {s(sDst)}, {s(sDst)}, {s(sBS)}")
        lE = k.newlabel("uE")
        k(f"s_cmp_eq_u32 {s(sCS)}, -1")
        k(f"s_cbranch_scc1 {lE}")
        k(f"s_cmp_eq_u32 {s(sTS)}, 128")
        k(f"s_cselect_b32 {s(sT)}, 32, 576")
        k(f"v_lshrrev_b32 {v(vT+1)}, 1, {v(vT)}")
        k(f"v_mul_u32_u24 {v(vT+1)}, {s(sT)}, {v(vT+1)}")
        k(f"v_and_b32 {v(vT+2)}, 1, {v(vT)}")
        k(f"v_lshl_add_u32 {v(vT+1)}, {v(vT+2)}, 4, {v(vT+1)}")
        k(f"v_and_b32 {v(vT+2)}, 15, {v(vLane)}")
        k(f"v_cmp_eq_u32 vcc, 0, {v(vT+2)}")
        k(f"v_mov_b32 {v(vT+2)}, 0x7f000000")
        k(f"v_cndmask_b32 {v(vT+1)}, {v(vT+2)}, {v(vT+1)}, vcc")
        k(f"s_lshl_b32 {s(sT)}, {s(sT)}, 1")
        dd = [self.vX, vO, vO + 4, vO + 8]
        for b in range(4):
            k(f"v_mfma_f32_16x16x32_bf16 {v(dd[b],4)}, {v(vO+4*b,4)}, {v(self.vOne,4)}, 0")
        for b in range(4):
            k(f"buffer_store_dwordx4 {v(dd[b],4)}, {v(vT+1)}, {s(self.S_DST,4)}, {s(sCS)} offen")
            if b < 3: k(f"s_add_u32 {s(sCS)}, {s(sCS)}, {s(sT)}")
        k.label(lE)

def gen_repack(name):
    k = Kernel(name)
    done = k.newlabel("done")
    k(f"s_cmp_ge_u32 s2, 256")
    k(f"s_cbranch_scc1 {done}")
    k("s_load_dwordx2 s[24:25], s[0:1], 96")
    k("s_load_dwordx2 s[26:27], s[0:1], 40")
    k("s_load_dwordx2 s[28:29], s[0:1], 72")
    k("s_load_dwordx2 s[30:31], s[0:1], 56")
    k("s_load_dwordx2 s[32:33], s[0:1], 64")
    k("v_lshrrev_b32 v2, 6, v0"); k("v_and_b32 v1, 63, v0"); k("v_readfirstlane_b32 s34, v2")
    k("s_lshl_b32 s35, s2, 3"); k("s_add_u32 s35, s35, s34")
    k("s_lshl_b32 s36, s34, 12")
    for i in range(4): k(f"v_mov_b32 v{24+i}, 0x3f803f80")
    k("s_waitcnt lgkmcnt(0)")
    srd(k, 12, 24, 0, WS_SIZE)
    rp = Repack2(k, 26, 40, 8, 12, 36, 1, 4, 8, 24, 28)
    loop = k.newlabel("loop"); k.label(loop)
    rp.phase1(35)
    k("s_waitcnt vmcnt(0)")
    rp.phase2()
    k("s_add_u32 s35, s35, 2048")
    k(f"s_cmp_lt_u32 s35, {NTASK}")
    k(f"s_cbranch_scc1 {loop}")
    k.label(done); k("s_endpgm")
    return k, 32, 32768, 0
```

```python
from asmlib import *
from layout import *

def srd(k, base, ptr, off, size):
    if off:
        k(f"s_add_u32 {s(base)}, {s(ptr)}, {off}")
        k(f"s_addc_u32 {s(base+1)}, {s(ptr+1)}, 0")
    else:
        k(f"s_mov_b32 {s(base)}, {s(ptr)}")
        k(f"s_mov_b32 {s(base+1)}, {s(ptr+1)}")
    k(f"s_mov_b32 {s(base+2)}, {size}")
    k(f"s_mov_b32 {s(base+3)}, 0x00020000")

def gen_sg2(name, KD, xoff, woff, res_arg, res_off, out_arg, out_off, extras, NS=4, D=None, exp=''):
    k = Kernel(name)
    NKS = KD // 32
    NST = NKS // 4
    D = NS - 1 if D is None else D
    WREG = 21504
    PITCH = 336
    S_X, S_W, S_R, S_O, S_E = 8, 12, 16, 20, 24
    sWS, sRp, sOp = 28, 30, 32
    sRT, sCT, sWV, sXo, sWo, sM0, sCnt, sT, sOwn = 34, 35, 36, 37, 38, 39, 40, 41, 42
    vLane = 1; vXo = 2; vWo = 6; vWh = 7; vT = 8
    vF = 16
    NV_SL = min(NS, 4)
    vAcc = vF + NV_SL * 36
    nv = vAcc + 80
    nagpr = (NS - NV_SL) * 36
    def fr(slot, off):
        return v(vF + slot * 36 + off, 4) if slot < NV_SL else a((slot - NV_SL) * 36 + off, 4)
    done = k.newlabel("done")
    k(f"s_cmp_ge_u32 s2, 256")
    k(f"s_cbranch_scc1 {done}")
    k(f"s_load_dwordx2 {s(sWS,2)}, s[0:1], 96")
    k(f"s_load_dwordx2 {s(sRp,2)}, s[0:1], {res_arg}")
    k(f"s_load_dwordx2 {s(sOp,2)}, s[0:1], {out_arg}")
    k(f"v_lshrrev_b32 {v(vT)}, 6, v0")
    k(f"v_and_b32 {v(vLane)}, 63, v0")
    k(f"v_readfirstlane_b32 {s(sWV)}, {v(vT)}")
    k(f"s_and_b32 {s(sRT)}, s2, 7")
    k(f"s_lshl_b32 {s(sRT)}, {s(sRT)}, 2")
    k(f"s_lshr_b32 {s(sT)}, s2, 3")
    k(f"s_and_b32 {s(sCT)}, {s(sT)}, 3")
    k(f"s_add_u32 {s(sRT)}, {s(sRT)}, {s(sCT)}")
    k(f"s_lshr_b32 {s(sCT)}, {s(sT)}, 2")
    k(f"v_lshlrev_b32 {v(vXo)}, 4, {v(vLane)}")
    for b in range(1, 4):
        k(f"v_add_u32 {v(vXo+b)}, {b*NKS*1024}, {v(vXo)}")
    k(f"v_mov_b32 {v(vWo)}, {v(vXo)}")
    k(f"v_lshrrev_b32 {v(vT)}, 4, {v(vLane)}")
    k(f"v_and_b32 {v(vT+1)}, 15, {v(vLane)}")
    k(f"v_lshl_add_u32 {v(vT)}, {v(vT)}, 3, {v(vT+1)}")
    k(f"v_lshlrev_b32 {v(vT)}, 4, {v(vT)}")
    k(f"v_add_u32 {v(vT)}, 4096, {v(vT)}")
    k(f"v_cmp_gt_u32 vcc, 8, {v(vT+1)}")
    k(f"v_mov_b32 {v(vT+2)}, 0x7f000000")
    k(f"v_cndmask_b32 {v(vWh)}, {v(vT+2)}, {v(vT)}, vcc")
    k(f"s_mul_i32 {s(sM0)}, {s(sWV)}, {WREG}")
    k(f"s_waitcnt lgkmcnt(0)")
    srd(k, S_X, sWS, xoff, 128 * NKS * 1024)
    srd(k, S_W, sWS, woff, 8 * NKS * 4608)
    k(f"s_mul_i32 {s(sXo)}, {s(sRT)}, {4*NKS if 'samex' not in exp else 0}")
    k(f"s_add_u32 {s(sXo)}, {s(sXo)}, {s(sWV)}")
    k(f"s_lshl_b32 {s(sXo)}, {s(sXo)}, 10")
    k(f"s_mul_i32 {s(sWo)}, {s(sCT)}, {NKS if 'samew' not in exp else 0}")
    k(f"s_add_u32 {s(sWo)}, {s(sWo)}, {s(sWV)}")
    k(f"s_mul_i32 {s(sWo)}, {s(sWo)}, 4608")

    if 'rot' in exp:
        pass
    def issue(slot):
        for b in range(4):
            k(f"buffer_load_dwordx4 {fr(slot,b*4)}, {v(vXo+b)}, {s(S_X,4)}, {s(sXo)} offen")
        for i in range(4):
            k(f"buffer_load_dwordx4 {fr(slot,16+i*4)}, {v(vWo)}, {s(S_W,4)}, {s(sWo)} offen offset:{1024*i}")
        k(f"buffer_load_dwordx4 {fr(slot,32)}, {v(vWh)}, {s(S_W,4)}, {s(sWo)} offen")
        k(f"s_add_u32 {s(sXo)}, {s(sXo)}, 4096")
        k(f"s_add_u32 {s(sWo)}, {s(sWo)}, {4*4608}")

    for sl in range(D):
        issue(sl)
    srd(k, S_R, sRp, res_off, 2048 * 1152)
    srd(k, S_O, sOp, out_off, 2048 * 1152)
    if extras:
        srd(k, S_E, sWS, WS_HF, WS_STAT - WS_HF + 2048 * 64)
    for i in range(80):
        k(f"v_mov_b32 {v(vAcc+i)}, 0")

    def step(slot, outstanding_after, do_issue):
        if do_issue:
            issue((slot + D) % NS)
            outstanding_after += 1
        k(f"s_waitcnt vmcnt({9*outstanding_after})")
        for cb in range(5):
            for rb in range(4 if 'nomfma' not in exp else 0):
                acc = v(vAcc + (cb * 4 + rb) * 4, 4)
                k(f"v_mfma_f32_16x16x32_bf16 {acc}, {fr(slot,16+cb*4)}, {fr(slot,rb*4)}, {acc}")

    nloop = NST // NS - 1
    k(f"s_mov_b32 {s(sCnt)}, {nloop}")
    loop = k.newlabel("loop")
    k.label(loop)
    for sl in range(NS):
        step(sl, D - 1, True)
    k(f"s_sub_u32 {s(sCnt)}, {s(sCnt)}, 1")
    k(f"s_cmp_lg_u32 {s(sCnt)}, 0")
    k(f"s_cbranch_scc1 {loop}")
    k.check_loop(loop)
    for sl in range(NS):
        if sl + D < NS:
            step(sl, D - 1, True)
        else:
            step(sl, NS - 1 - sl, False)
    k(f"s_lshl_b32 {s(sCnt)}, {s(sRT)}, 6")
    k(f"s_mul_i32 {s(sCnt)}, {s(sCnt)}, 1152")
    k(f"s_lshl_b32 {s(sOwn)}, {s(sCT)}, 3")
    k(f"s_add_u32 {s(sT)}, {s(sCT)}, 64")
    for r in range(3):
        b = vF + r * 48
        vI, vRow, vC8, vL, vG, vE, vRs, vP = b, b + 1, b + 2, b + 3, b + 4, b + 5, b + 8, b + 12
        k(f"v_add_u32 {v(vI)}, {256*r}, v0")
        k(f"v_mul_u32_u24 {v(vRow)}, 1821, {v(vI)}")
        k(f"v_lshrrev_b32 {v(vRow)}, 14, {v(vRow)}")
        k(f"v_mul_u32_u24 {v(vC8)}, 9, {v(vRow)}")
        k(f"v_sub_u32 {v(vC8)}, {v(vI)}, {v(vC8)}")
        k(f"v_mul_u32_u24 {v(vL)}, {PITCH}, {v(vRow)}")
        k(f"v_lshl_add_u32 {v(vL)}, {v(vC8)}, 5, {v(vL)}")
        k(f"v_cmp_eq_u32 vcc, 8, {v(vC8)}")
        k(f"v_add_u32 {v(vC8)}, {s(sOwn)}, {v(vC8)}")
        k(f"v_mov_b32 {v(vG)}, {s(sT)}")
        k(f"v_cndmask_b32 {v(vC8)}, {v(vC8)}, {v(vG)}, vcc")
        k(f"v_mul_u32_u24 {v(vG)}, 1152, {v(vRow)}")
        k(f"v_lshl_add_u32 {v(vG)}, {v(vC8)}, 4, {v(vG)}")
        if extras:
            k(f"v_lshrrev_b32 {v(vE)}, 4, {v(vRow)}")
            k(f"v_mul_u32_u24 {v(vE)}, 18432, {v(vE)}")
            k(f"v_lshl_add_u32 {v(vE)}, {v(vC8)}, 8, {v(vE)}")
            k(f"v_and_b32 {v(vRs)}, 15, {v(vRow)}")
            k(f"v_lshl_add_u32 {v(vE)}, {v(vRs)}, 4, {v(vE)}")
        if r == 2:
            k(f"v_cmp_gt_u32 vcc, 576, {v(vI)}")
            k(f"v_mov_b32 {v(vRs)}, 0x7f000000")
            k(f"v_cndmask_b32 {v(vG)}, {v(vRs)}, {v(vG)}, vcc")
            k(f"v_cndmask_b32 {v(vL)}, 0, {v(vL)}, vcc")
            if extras:
                k(f"v_cndmask_b32 {v(vE)}, {v(vRs)}, {v(vE)}, vcc")
        k(f"buffer_load_dwordx4 {v(vRs,4)}, {v(vG)}, {s(S_R,4)}, {s(sCnt)} offen")
    k(f"v_and_b32 {v(vT)}, 15, {v(vLane)}")
    k(f"v_mul_u32_u24 {v(vT)}, {PITCH}, {v(vT)}")
    k(f"v_lshrrev_b32 {v(vT+1)}, 4, {v(vLane)}")
    k(f"v_lshl_add_u32 {v(vT)}, {v(vT+1)}, 4, {v(vT)}")
    k(f"v_add_u32 {v(vT)}, {s(sM0)}, {v(vT)}")
    for cb in range(5):
        for rb in range(4):
            k(f"ds_write_b128 {v(vT)}, {v(vAcc+(cb*4+rb)*4,4)} offset:{rb*16*PITCH+cb*64}")
    if extras:
        k(f"s_mul_i32 {s(sT)}, {s(sRT)}, {4*18432}")
    k("s_waitcnt lgkmcnt(0)")
    k("s_barrier")
    for r in range(3):
        b = vF + r * 48
        vL, vP = b + 3, b + 12
        for w in range(4):
            k(f"ds_read_b128 {v(vP+w*8,4)}, {v(vL)} offset:{w*WREG}")
            k(f"ds_read_b128 {v(vP+w*8+4,4)}, {v(vL)} offset:{w*WREG+16}")
    STAT_L = 4 * WREG
    for r in range(3):
        b = vF + r * 48
        vI, vRow, vC8, vL, vG, vE, vRs, vP = b, b + 1, b + 2, b + 3, b + 4, b + 5, b + 8, b + 12
        k(f"s_waitcnt lgkmcnt({min(15,8*(2-r))})" if not extras else f"s_waitcnt lgkmcnt({[15,8,0][r]})")
        for j in range(8):
            k(f"v_add_f32 {v(vP+j)}, {v(vP+j)}, {v(vP+8+j)}")
            k(f"v_add_f32 {v(vP+16+j)}, {v(vP+16+j)}, {v(vP+24+j)}")
        if r == 0:
            k(f"s_waitcnt vmcnt(0)")
        for j in range(8):
            k(f"v_add_f32 {v(vP+j)}, {v(vP+j)}, {v(vP+16+j)}")
        for j in range(4):
            k(f"v_cvt_pk_bf16_f32 {v(vP+8+j)}, {v(vP+2*j)}, {v(vP+2*j+1)}")
        for j in range(4):
            k(f"v_lshlrev_b32 {v(vP+2*j)}, 16, {v(vP+8+j)}")
            k(f"v_and_b32 {v(vP+2*j+1)}, 0xffff0000, {v(vP+8+j)}")
            k(f"v_lshlrev_b32 {v(vP+16+2*j)}, 16, {v(vRs+j)}")
            k(f"v_and_b32 {v(vP+16+2*j+1)}, 0xffff0000, {v(vRs+j)}")
        for j in range(8):
            k(f"v_add_f32 {v(vP+j)}, {v(vP+j)}, {v(vP+16+j)}")
        for j in range(4):
            k(f"v_cvt_pk_bf16_f32 {v(vP+8+j)}, {v(vP+2*j)}, {v(vP+2*j+1)}")
        k(f"buffer_store_dwordx4 {v(vP+8,4)}, {v(vG)}, {s(S_O,4)}, {s(sCnt)} offen")
        if extras:
            k(f"buffer_store_dwordx4 {v(vP+8,4)}, {v(vE)}, {s(S_E,4)}, {s(sT)} offen")
            for j in range(4):
                k(f"v_lshlrev_b32 {v(vP+2*j)}, 16, {v(vP+8+j)}")
                k(f"v_and_b32 {v(vP+2*j+1)}, 0xffff0000, {v(vP+8+j)}")
            k(f"v_add_f32 {v(vP+16)}, {v(vP)}, {v(vP+1)}")
            k(f"v_mul_f32 {v(vP+17)}, {v(vP)}, {v(vP)}")
            k(f"v_fmac_f32 {v(vP+17)}, {v(vP+1)}, {v(vP+1)}")
            for j in range(2, 8):
                k(f"v_add_f32 {v(vP+16)}, {v(vP+16)}, {v(vP+j)}")
                k(f"v_fmac_f32 {v(vP+17)}, {v(vP+j)}, {v(vP+j)}")
            k(f"v_lshlrev_b32 {v(vI)}, 3, {v(vI)}")
            k(f"v_add_u32 {v(vI)}, {STAT_L}, {v(vI)}")
            k(f"ds_write_b64 {v(vI)}, {v(vP+16,2)}")
    if extras:
        k("s_waitcnt lgkmcnt(0)")
        k("s_barrier")
        lcs = k.newlabel("cs")
        k(f"s_cmp_eq_u32 {s(sWV)}, 1")
        k(f"s_cbranch_scc1 {lcs}")
        k(f"s_cmp_lg_u32 {s(sWV)}, 0")
        k(f"s_cbranch_scc1 {done}")
        b = vF
        k(f"v_mul_u32_u24 {v(b)}, 72, {v(vLane)}")
        k(f"v_add_u32 {v(b)}, {STAT_L}, {v(b)}")
        for j in range(9):
            k(f"ds_read_b64 {v(b+2+2*j,2)}, {v(b)} offset:{8*j}")
        k(f"s_lshl_b32 {s(sT)}, {s(sRT)}, 12")
        k(f"s_lshl_b32 {s(sOwn)}, {s(sCT)}, 3")
        k(f"s_add_u32 {s(sT)}, {s(sT)}, {s(sOwn)}")
        k(f"s_add_u32 {s(sT)}, {s(sT)}, {WS_STAT-WS_HF}")
        k(f"v_lshlrev_b32 {v(b+1)}, 6, {v(vLane)}")
        k("s_waitcnt lgkmcnt(0)")
        for j in range(1, 9):
            k(f"v_add_f32 {v(b+2)}, {v(b+2)}, {v(b+2+2*j)}")
            k(f"v_add_f32 {v(b+3)}, {v(b+3)}, {v(b+3+2*j)}")
        k(f"buffer_store_dwordx2 {v(b+2,2)}, {v(b+1)}, {s(S_E,4)}, {s(sT)} offen")
        k(f"s_branch {done}")
        k.label(lcs)
        srd(k, S_X, sWS, WS_CSP, 18 * 9216 * 4)
        srd(k, S_W, sWS, WS_CS, 9216 * 4)
        k(f"v_lshlrev_b32 {v(b)}, 2, {v(vLane)}")
        k(f"v_cmp_gt_u32 vcc, 36, {v(vLane)}")
        k(f"v_mov_b32 {v(b+1)}, 0x7f000000")
        k(f"v_cndmask_b32 {v(b)}, {v(b+1)}, {v(b)}, vcc")
        k(f"s_mul_i32 {s(sT)}, s2, 144")
        k(f"s_mov_b32 {s(sOwn)}, {s(sT)}")
        for j in range(18):
            k(f"buffer_load_dword {v(b+2+j)}, {v(b)}, {s(S_X,4)}, {s(sOwn)} offen")
            if j < 17: k(f"s_add_u32 {s(sOwn)}, {s(sOwn)}, {9216*4}")
        k("s_waitcnt vmcnt(0)")
        for j in range(1, 18):
            k(f"v_add_f32 {v(b+2)}, {v(b+2)}, {v(b+2+j)}")
        k(f"buffer_store_dword {v(b+2)}, {v(b)}, {s(S_W,4)}, {s(sT)} offen")
    k.label(done)
    k("s_endpgm")
    nv = max(nv, vF + 3 * 48)
    return k, nv, 4 * WREG + 768 * 8, nagpr
```

```python
MB = 1 << 20
WS_XNF  = 0 * MB
WS_H    = 4 * MB
WS_HF   = 8 * MB
WS_STAT = 12 * MB
WS_CS   = 13 * MB
WS_K    = 16 * MB
WS_VT   = 32 * MB
WS_CTX  = 48 * MB
WS_ACT  = 64 * MB
WS_WOF  = 84 * MB
WS_WDF  = 90 * MB
WS_WGU  = 96 * MB
WS_WQF  = 108 * MB
WS_Q    = 116 * MB
WS_SIZE = 268435456

def kmapA(g, j):
    return 16 * (g // 2) + 4 * (g % 2) + (j % 4) + 8 * (j // 4)
def kmapB(g, j):
    return 4 * g + (j % 4) + 16 * (j // 4)
def act_k(s, g, j):
    return 32 * s + kmapB(g, j)
WS_CSP  = 124 * MB
WS_QA   = 128 * MB
```

```python
from asmlib import *
from layout import *
from k_sg2 import gen_sg2
from k_ffnup import gen_ffnup
from k_kv import gen_kv
from k_attn4 import gen_attn
from k_repack2 import gen_repack
import sys
opts = dict(a.split("=") for a in sys.argv[2:])
out = sys.argv[1] if len(sys.argv) > 1 else "../cdna_kernels/sequential_preLN__compressed_kv_cla__swiglu_ffn__prompt.s"
ref = open("../cdna_kernels/sequential_preLN__compressed_kv_cla__swiglu_ffn__prompt.s.ref").read().split("\n")
hdr = "\n".join(l for l in ref[:14]) + "\n"
ks = [("k1_kv_kernel", gen_kv("k1_kv_kernel", opts.get("k1", "")), 512),
      ("k2_attn_kernel", gen_attn("k2_attn_kernel", opts.get("k2", "ones")), 512),
      ("k3_outproj_kernel", gen_sg2("k3_outproj_kernel", 4096, WS_CTX, WS_WOF, 0, 0, 96, WS_H, True, 4, 3), 256),
      ("k4_up_kernel", gen_ffnup("k4_up_kernel", opts.get("k4", "")), 512),
      ("k5_down_kernel", gen_sg2("k5_down_kernel", 4608, WS_ACT, WS_WDF, 96, WS_H, 80, 0, False, 4, 3), 256)]
if "k0" in opts: ks = [("k0_repack_kernel", gen_repack("k0_repack_kernel"), 512)] + ks
body = '.amdgcn_target "amdgcn-amd-amdhsa--gfx950"\n'
for name, (k, nv, lds, na), blk in ks:
    hdr += f"; @launch kernel={name} grid=(256,1,1) block=({blk},1,1) lds={lds}\n"
    txt = kernel_text(k, nv, agprs=na)
    if name[:2] in opts.get("sc1", "k1_k2_k4").split("_"):
        import re
        txt = re.sub(r"(buffer_store_dword\w* [^\n]*)", lambda m: m.group(1) + " sc1", txt)
    body += txt
    print(name, k.count(), k.nops_inserted, nv, na, lds)
if "st" in opts:
    import re
    body = re.sub(r"(buffer_store_dwordx4 [^\n]*)", lambda m: m.group(1) + " " + opts["st"].replace("_", " "), body)
open(out, "w").write(hdr + body)
```

```python
from asmlib import *
from layout import *
from k_sg2 import srd
from k_repack2 import Repack2, NTASK
import math, struct, re

def f32(x): return "0x%08x" % struct.unpack('<I', struct.pack('<f', x))[0]

def gen_attn(name, exp=''):
    k = Kernel(name)
    THR = 8.0
    QA = 131072
    MF = "v_mfma_f32_16x16x32_bf16"
    ONES = 'adds' not in exp
    RP = 'norp' not in exp
    m_ = re.search(r'sp(\d+)', exp); SPL = int(m_.group(1)) if m_ else (15 if ONES else 25)
    LEAD = 5
    S_WQ, S_XN, S_KV, S_C = 8, 12, 16, 20
    sWS, sQp, sMask, sForce, sTmp2 = 24, 26, 28, 30, 32
    (sH, sP, sWV, sW4, sG, sT, sT2, sK0, sR0, sFirst, sPend, sIt, sNB, sKVb, sLg, sRA, sCo, sWo, sXo, sNBg, sJ, sDk, sDv, sH3) = range(34, 58)
    sDM = 58
    sPtr = 66
    sRS = 74
    sRp, sVw, sTask, sKi, sLst, sQo = 84, 85, 86, 87, 88, 89
    sRet = 90
    if 'qst' in exp: sRp, sVw, sTask, sKi, sLst, sQo = 66, 67, 68, 69, 70, 71; sRet = 72
    vLane, vL16, vD, vMax, vT = 1, 2, 3, 4, 5
    vL, vLB, vM, vAl = 14, 16, 18, 20
    vKa, vVa, vWd, vWd2 = 22, 26, 30, 31
    vQ, vS, vP, vN, vOne, vF, vO = 32, 64, 96, 112, 120, 128, 160
    vLa = vO + 64
    NO = 72 if ONES else 64
    vR = 232
    nv = 240
    st_ = Stamps(k, 'stamp' in exp, base=74 if 'qst' in exp else 92)
    done = k.newlabel("done")
    k(f"s_cmp_ge_u32 s2, 256")
    k(f"s_cbranch_scc1 {done}")
    st_.stamp(True); st_.stamp()
    k(f"s_load_dwordx2 {s(sWS,2)}, s[0:1], 96")
    k(f"s_load_dwordx2 {s(sQp,2)}, s[0:1], 16")
    for i, off in enumerate((40, 72, 56, 64)):
        k(f"s_load_dwordx2 {s(sPtr+2*i,2)}, s[0:1], {off}")
    k(f"v_lshrrev_b32 {v(vT)}, 6, v0")
    k(f"v_and_b32 {v(vLane)}, 63, v0")
    k(f"v_readfirstlane_b32 {s(sWV)}, {v(vT)}")
    k(f"s_and_b32 {s(sH)}, s2, 7")
    k(f"s_lshl_b32 {s(sH)}, {s(sH)}, 2")
    k(f"s_lshr_b32 {s(sT)}, s2, 3")
    k(f"s_and_b32 {s(sT2)}, {s(sT)}, 3")
    k(f"s_add_u32 {s(sH)}, {s(sH)}, {s(sT2)}")
    k(f"s_lshr_b32 {s(sP)}, {s(sT)}, 2")
    k(f"s_and_b32 {s(sW4)}, {s(sWV)}, 3")
    k(f"s_lshr_b32 {s(sG)}, {s(sWV)}, 2")
    k(f"v_lshlrev_b32 {v(vL16)}, 4, {v(vLane)}")
    k(f"s_sub_u32 {s(sRA)}, 15, {s(sP)}")
    k(f"s_lshl_b32 {s(sRA)}, {s(sRA)}, 7")
    k(f"s_lshl_b32 {s(sT)}, {s(sW4)}, 5")
    k(f"s_add_u32 {s(sRA)}, {s(sRA)}, {s(sT)}")
    k(f"s_lshl_b32 {s(sR0)}, {s(sP)}, 7")
    k(f"s_add_u32 {s(sR0)}, {s(sR0)}, {s(sT)}")
    k(f"s_lshl_b32 {s(sNB)}, {s(sP)}, 1")
    k(f"s_add_u32 {s(sNB)}, {s(sNB)}, 2")
    k(f"s_cmp_eq_u32 {s(sG)}, 0")
    k(f"s_cselect_b32 {s(sR0)}, {s(sRA)}, {s(sR0)}")
    k(f"s_cselect_b32 {s(sNBg)}, 99, {s(sNB)}")
    k(f"s_sub_u32 {s(sJ)}, 18, {s(sNB)}")
    k(f"s_lshl_b32 {s(sJ)}, {s(sJ)}, 14")
    k(f"s_lshl_b32 {s(sLg)}, {s(sG)}, 16")
    k(f"v_lshrrev_b32 {v(vT)}, 4, {v(vLane)}")
    k(f"s_and_b32 {s(sT)}, {s(sWV)}, 1")
    k(f"s_lshl_b32 {s(sT)}, {s(sT)}, 2")
    k(f"v_or_b32 {v(vT+1)}, {s(sT)}, {v(vT)}")
    k(f"v_bfe_u32 {v(vT+2)}, {v(vLane)}, 1, 3")
    k(f"v_xor_b32 {v(vT+1)}, {v(vT+1)}, {v(vT+2)}")
    k(f"v_lshlrev_b32 {v(vT)}, 13, {v(vT)}")
    k(f"v_lshl_add_u32 {v(vT)}, {v(vT+1)}, 5, {v(vT)}")
    k(f"v_and_b32 {v(vT+1)}, 1, {v(vLane)}")
    k(f"v_lshl_add_u32 {v(vWd)}, {v(vT+1)}, 4, {v(vT)}")
    k(f"v_add_u32 {v(vWd2)}, {32768-1024}, {v(vWd)}")
    k(f"s_lshl_b32 {s(sWo)}, {s(sWV)}, 16")
    k(f"s_lshl_b32 {s(sT)}, {s(sH)}, 8")
    k(f"s_add_u32 {s(sWo)}, {s(sWo)}, {s(sT)}")
    k(f"s_lshr_b32 {s(sXo)}, {s(sR0)}, 4")
    k(f"s_mul_i32 {s(sXo)}, {s(sXo)}, 18432")
    k(f"v_add_u32 {v(vMax)}, 18432, {v(vL16)}")
    k(f"s_lshl_b32 {s(sKVb)}, {s(sH)}, 19")
    k(f"s_lshl_b32 {s(sT)}, {s(sW4)}, 12")
    k(f"s_add_u32 {s(sKVb)}, {s(sKVb)}, {s(sT)}")
    k(f"s_add_u32 {s(sLg)}, {s(sLg)}, {s(sT)}")
    k(f"s_lshl_b32 {s(sCo)}, {s(sWV)}, 11")
    k(f"s_waitcnt lgkmcnt(0)")
    srd(k, S_WQ, sQp, 0, 576 * 8192)
    srd(k, S_XN, sWS, WS_XNF, 2048 * 1152)

    CH = [16384, 32768, 49152, 81920, 98304, 114688, 131072, 147456, 16384]
    vm = []
    def vm_need(tags):
        idx = max((i for i, x in enumerate(vm) if x in tags), default=-1)
        if idx >= 0:
            k(f"s_waitcnt vmcnt({len(vm)-1-idx})")
            del vm[:idx + 1]
    def dma_wq(c):
        k(f"s_add_u32 m0, {s(sCo)}, {CH[c]}")
        k(f"buffer_load_dwordx4 {v(vWd)}, {s(S_WQ,4)}, {s(sWo)} offen lds")
        k(f"buffer_load_dwordx4 {v(vWd2)}, {s(S_WQ,4)}, {s(sWo)} offen offset:1024 lds")
        k(f"s_add_u32 {s(sWo)}, {s(sWo)}, {64*8192}")
        vm.extend([('wq', c)] * 2)
    def xr(ks, qb): return vQ + ((ks * 2 + qb) % 24) * 4
    def load_xn(c):
        for kk in range(2):
            ks = 2 * c + kk
            k(f"buffer_load_dwordx4 {v(xr(ks,0),4)}, {v(vL16)}, {s(S_XN,4)}, {s(sXo)} offen offset:{kk*1024}")
            k(f"buffer_load_dwordx4 {v(xr(ks,1),4)}, {v(vMax)}, {s(S_XN,4)}, {s(sXo)} offen offset:{kk*1024}")
        k(f"s_add_u32 {s(sXo)}, {s(sXo)}, 2048")
        vm.extend([('xn', c)] * 4)
    def dma_piece(isv, slot, so, j):
        if j == 0: k(f"s_add_u32 m0, {s(sLg)}, {isv*32768 + slot*16384}")
        k(f"buffer_load_dwordx4 {v(vL16)}, {s(S_KV,4)}, {s(so)} offen offset:{1024*j} lds")
    def adv1():
        k(f"s_add_u32 {s(sDv)}, {s(sDk)}, {WS_VT-WS_K}")
        k(f"s_add_u32 {s(sKi)}, {s(sKi)}, 1")
        k(f"s_cmp_eq_u32 {s(sKi)}, {s(sNBg)}")
        k(f"s_cselect_b32 {s(sT2)}, {s(sJ)}, 0x4000")
    def adv2():
        k(f"s_add_u32 {s(sDk)}, {s(sDk)}, {s(sT2)}")
        k(f"s_cmp_gt_u32 {s(sKi)}, 16")
        k(f"s_cselect_b32 {s(sDk)}, 0x70000000, {s(sDk)}")

    m_ = re.search(r'pre(\d)', exp); PRE = int(m_.group(1)) if m_ else 3
    m_ = re.search(r'ini(\d)', exp); INI = int(m_.group(1)) if m_ else 1
    for c in range(INI): dma_wq(c); load_xn(c)
    srd(k, S_KV, sWS, WS_K, 32 * MB)
    srd(k, S_C, sWS, WS_CTX, 16 * MB)
    k(f"v_lshrrev_b32 {v(vT)}, 4, {v(vLane)}")
    k(f"v_bfe_u32 {v(vT+1)}, {v(vLane)}, 2, 2")
    k(f"v_lshl_add_u32 {v(vT+2)}, {v(vT)}, 3, {v(vT+1)}")
    k(f"v_and_b32 {v(vT)}, 1, {v(vT)}")
    k(f"v_lshl_or_b32 {v(vT)}, {v(vT)}, 2, {v(vT+1)}")
    k(f"v_lshlrev_b32 {v(vT+2)}, 8, {v(vT+2)}")
    k(f"v_and_b32 {v(vT+1)}, 3, {v(vLane)}")
    k(f"v_lshl_add_u32 {v(vT+2)}, {v(vT+1)}, 3, {v(vT+2)}")
    k(f"v_add_u32 {v(vT+2)}, {CH[0]}, {v(vT+2)}")
    for db in range(8):
        k(f"v_xor_b32 {v(vT+1)}, {db}, {v(vT)}")
        k(f"v_lshl_add_u32 {v(vKa+db)}, {v(vT+1)}, 5, {v(vT+2)}")
    vA = vR
    k(f"v_and_b32 {v(vT)}, 15, {v(vLane)}")
    k(f"v_lshrrev_b32 {v(vT+1)}, 4, {v(vLane)}")
    k(f"s_lshl_b32 {s(sT)}, {s(sG)}, 16")
    k(f"v_xor_b32 {v(vT+2)}, {v(vT)}, {v(vT+1)}")
    k(f"v_lshlrev_b32 {v(vT+3)}, 8, {v(vT)}")
    k(f"v_add_u32 {v(vT+3)}, {s(sT)}, {v(vT+3)}")
    for ds in range(4):
        k(f"v_xor_b32 {v(vT+4)}, {4*ds}, {v(vT+2)}")
        k(f"v_lshl_add_u32 {v(vA+ds)}, {v(vT+4)}, 4, {v(vT+3)}")
    k(f"v_and_b32 {v(vT+2)}, 7, {v(vT+2)}")
    k(f"v_lshlrev_b32 {v(vT+3)}, 7, {v(vT)}")
    k(f"v_add_u32 {v(vT+3)}, {s(sT)}, {v(vT+3)}")
    k(f"v_add_u32 {v(vT+3)}, 32768, {v(vT+3)}")
    for hb in range(2):
        k(f"v_xor_b32 {v(vT+4)}, {4*hb}, {v(vT+2)}")
        k(f"v_lshl_add_u32 {v(vA+4+hb)}, {v(vT+4)}, 4, {v(vT+3)}")
    k(f"v_lshlrev_b32 {v(vT+1)}, 2, {v(vT+1)}")
    k(f"v_sub_u32 {v(vD)}, {v(vT)}, {v(vT+1)}")
    for j in range(4):
        k(f"v_cmp_gt_i32 {s(sDM+2*j,2)}, {j}, {v(vD)}")
    for r in (vL, vL + 1, vM, vM + 1): k(f"v_mov_b32 {v(r)}, 0")
    k(f"s_lshl_b32 {s(sLst)}, {s(sWV)}, 12"); k(f"s_add_u32 {s(sLst)}, {s(sLst)}, {QA}")
    k(f"s_lshl_b32 {s(sQo)}, s2, 15"); k(f"s_lshl_b32 {s(sT)}, {s(sW4)}, 13"); k(f"s_add_u32 {s(sQo)}, {s(sQo)}, {s(sT)}"); k(f"s_add_u32 {s(sQo)}, {s(sQo)}, {WS_QA}")
    k(f"s_mov_b32 {s(sFirst)}, 1"); k(f"s_mov_b32 {s(sPend)}, 0"); k(f"s_mov_b32 {s(sK0)}, 0"); k(f"s_mov_b32 {s(sH3)}, 0")
    k(f"s_mov_b64 {s(sForce,2)}, -1")
    k(f"s_mov_b32 {s(sIt)}, 0"); k(f"s_mov_b32 {s(sKi)}, 0"); k(f"s_mov_b32 {s(sDk)}, {s(sKVb)}")
    k(f"s_lshr_b32 {s(sRp)}, s2, 3"); k(f"s_mul_i32 {s(sT)}, {s(sRp)}, 205"); k(f"s_lshr_b32 {s(sT)}, {s(sT)}, 11"); k(f"s_mul_i32 {s(sT)}, {s(sT)}, 10")
    assert all((x * 205) >> 11 == x // 10 for x in range(33))
    k(f"s_mov_b32 {s(sRS+1)}, -1")
    k(f"s_sub_u32 {s(sRp)}, {s(sRp)}, {s(sT)}"); k(f"s_add_u32 {s(sRp)}, {s(sRp)}, 1")
    k(f"s_mov_b32 {s(sVw)}, 0")
    k(f"s_lshl_b32 {s(sTask)}, s2, 3"); k(f"s_add_u32 {s(sTask)}, {s(sTask)}, {s(sWV)}")
    pend = []
    def need(tag):
        if tag in pend:
            i = pend.index(tag)
            k(f"s_waitcnt lgkmcnt({min(15, len(pend)-1-i)})")
            del pend[:i + 1]
    def rd_wq(gi):
        kk, db = divmod(gi % 16, 8)
        b = vF + (gi % 8) * 4
        k(f"ds_read_b64_tr_b16 {v(b,2)}, {v(vKa+db)} offset:{kk*8192}")
        k(f"ds_read_b64_tr_b16 {v(b+2,2)}, {v(vKa+db)} offset:{kk*8192+1024}")
        pend.append(('w0', gi)); pend.append(('w', gi))
    vm_need([('wq', 0), ('xn', 0)])
    k("s_barrier")
    if 'qst' in exp: st_.stamp()
    for gi in range(LEAD): rd_wq(gi)
    for c in range(9):
        if 'qst' in exp and c in (1, 2, 4, 6): st_.stamp()
        for gi in range(16 * c, 16 * c + 16):
            kk, db = divmod(gi % 16, 8)
            ks = 2 * c + kk
            if gi % 16 == 15 - LEAD and c < 8:
                vm_need([('wq', c + 1), ('xn', c + 1)])
                k("s_barrier")
            need(('w', gi))
            for qb in range(2):
                acc = v(vO + (db * 2 + qb) * 4, 4)
                k(f"{MF} {acc}, {v(vF+(gi%8)*4,4)}, {v(xr(ks,qb),4)}, {acc if ks else 0}")
            if gi + LEAD < 144: rd_wq(gi + LEAD)
            g5 = (gi + LEAD) % 16
            if g5 >= 8 and (gi + LEAD) // 16 < 8:
                cc = (gi + LEAD) // 16
                k(f"v_add_u32 {v(vKa+g5-8)}, {(CH[cc+1]-CH[cc]) & 0xffffffff}, {v(vKa+g5-8)}")
            if gi < 10 and gi % 2 == 0 and INI + gi // 2 < PRE: dma_wq(INI + gi // 2)
            if gi < 10 and gi % 2 == 1 and INI + gi // 2 < PRE: load_xn(INI + gi // 2)
            if gi % 16 == 11 and c + PRE < 9: dma_wq(c + PRE)
            if gi % 16 == 13 and c + PRE < 9: load_xn(c + PRE)
            if c == 6 and gi % 16 in (4, 6, 8, 12):
                dma_piece(0, 0, sDk, [4, 6, 8, 12].index(gi % 16)); vm.append(('k0',))
    adv1(); adv2()
    k(f"s_mov_b32 {s(sT)}, {f32(math.log2(math.e) / math.sqrt(128.0))}")
    k("s_waitcnt vmcnt(0)")
    k("s_barrier")
    for i in range(6): k(f"v_mov_b32 {v(vKa+i)}, {v(vA+i)}")
    def rd(step_par, itpar, f, do_qk, do_pv):
        hb = 0 if step_par else 1
        b = vF + (f % 8) * 4
        if f < 8:
            if not do_qk: return
            ds, kb = divmod(f, 2)
            k(f"ds_read_b128 {v(b,4)}, {v(vKa+ds)} offset:{itpar*16384 + hb*8192 + kb*4096}")
        else:
            if not do_pv: return
            k(f"ds_read_b128 {v(b,4)}, {v(vVa+hb)} offset:{(1-itpar)*16384 + (f-8)*2048}")
    for f in range(8): rd(1, 0, f, True, False)
    n = 0
    for ds in range(4):
        for qb in range(2):
            for hh in range(2):
                o = vO + ((2 * ds + hh) * 2 + qb) * 4
                for j in range(4): k(f"v_mul_f32 {v(o+j)}, {s(sT)}, {v(o+j)}")
                k(f"v_cvt_pk_bf16_f32 {v(vQ+(ds*2+qb)*4+2*hh)}, {v(o)}, {v(o+1)}")
                k(f"v_cvt_pk_bf16_f32 {v(vQ+(ds*2+qb)*4+2*hh+1)}, {v(o+2)}, {v(o+3)}")
            dma_piece(n // 4, 1 - n // 4, sDk if n < 4 else sDv, n % 4); n += 1
    for i in range(8): k(f"v_mov_b32 {v(vN+i)}, 0")
    srd(k, S_XN, sWS, 0, WS_SIZE)
    rp = Repack2(k, sPtr, sRS, S_WQ, S_XN, sLst, vLane, vT + 1, vS + 16, vOne, 124)
    st_.stamp()

    ool = []
    LS = [k.newlabel("SLOW0"), k.newlabel("SLOW1"), k.newlabel("SLOWP"), k.newlabel("RPK")]
    def xreduce(r, tmp, op):
        for sw_ in ("v_permlane16_swap_b32", "v_permlane32_swap_b32"):
            k(f"v_mov_b32 {v(tmp)}, {v(r)}")
            k(f"{sw_} {v(r)}, {v(tmp)}")
            k(f"{op} {v(r)}, {v(r)}, {v(tmp)}")
    def vmwait():
        la, lr = k.newlabel("vwalt"), k.newlabel("vwret")
        k(f"s_cmp_lg_u32 {s(sVw)}, 0")
        k(f"s_cbranch_scc1 {la}")
        k("s_waitcnt vmcnt(0)")
        k.label(lr)
        def f():
            k.label(la)
            l2 = k.newlabel("vw8")
            k(f"s_cmp_eq_u32 {s(sVw)}, 8")
            k(f"s_mov_b32 {s(sVw)}, 0")
            k(f"s_cbranch_scc1 {l2}")
            k("s_waitcnt vmcnt(4)")
            k(f"s_branch {lr}")
            k.label(l2)
            k("s_waitcnt vmcnt(8)")
            k(f"s_branch {lr}")
        ool.append(f)

    def step(step_par, itpar, do_qk, do_sm, do_pv, sync, nxt, dma_carry=False, grp=1, extra_b=()):
        sw = vS + (0 if step_par else 16)
        sr = vS + (16 if step_par else 0)
        pw = vP + (8 if step_par else 0)
        pr = vP + (0 if step_par else 8)
        valu = []
        if do_sm:
            prev = []
            for qb in range(2):
                for kb in range(2):
                    for hh in range(2):
                        r0 = sr + (kb * 2 + qb) * 4 + 2 * hh
                        valu.append(f"v_exp_f32 {v(r0)}, {v(r0)}")
                        valu.append(f"v_exp_f32 {v(r0+1)}, {v(r0+1)}")
                        valu.extend(prev)
                        prev = [f"v_cvt_pk_bf16_f32 {v(pw+qb*4+kb*2+hh)}, {v(r0)}, {v(r0+1)}"]
                        if not ONES:
                            prev = [f"v_add_f32 {v(vL+qb)}, {v(vL+qb)}, {v(r0)}"] + prev + [f"v_add_f32 {v(vL+qb)}, {v(vL+qb)}, {v(r0+1)}"]
            valu.extend(prev)
        mx = []
        if do_qk:
            mx = [f"v_max3_f32 {v(vMax)}, {v(sw)}, {v(sw+1)}, {v(sw+2)}",
                  f"v_max3_f32 {v(vT)}, {v(sw+3)}, {v(sw+4)}, {v(sw+5)}",
                  f"v_max3_f32 {v(vMax)}, {v(vMax)}, {v(sw+6)}, {v(sw+7)}",
                  f"v_max3_f32 {v(vT)}, {v(vT)}, {v(sw+8)}, {v(sw+9)}",
                  f"v_max3_f32 {v(vMax)}, {v(vMax)}, {v(sw+10)}, {v(sw+11)}",
                  f"v_max3_f32 {v(vT)}, {v(vT)}, {v(sw+12)}, {v(sw+13)}",
                  f"v_max3_f32 {v(vMax)}, {v(vMax)}, {v(sw+14)}, {v(sw+15)}",
                  f"v_max_f32 {v(vMax)}, {v(vMax)}, {v(vT)}",
                  f"v_cmp_lt_f32 vcc, {f32(THR)}, {v(vMax)}"]
        G0 = (grp == 0)
        qa, qc = [], []
        if dma_carry:
            if G0:
                qa = [(lambda j=j: dma_piece(0, 1 - itpar, sDk, j)) for j in range(4)]
                qc = [(lambda j=j: dma_piece(1, itpar, sDv, j)) for j in range(4)]
            else:
                qa = [(lambda j=j: dma_piece(1, itpar, sDv, j)) for j in range(4)]
        if sync:
            qa = [adv1, adv2]
            if not G0: qc = [(lambda j=j: dma_piece(0, itpar, sDk, j)) for j in range(4)]
        def maskpre():
            k(f"s_cmp_eq_u32 {s(sK0)}, {s(sR0)}")
            k(f"s_cselect_b64 {s(sMask,2)}, -1, {s(sForce,2)}")
        def maskpre2():
            if step_par == 0:
                k(f"s_add_u32 {s(sIt)}, {s(sIt)}, 1")
                if not G0:
                    k(f"s_cmp_eq_u32 {s(sIt)}, {s(sNBg)}")
                    k(f"s_cselect_b64 {s(sMask,2)}, -1, {s(sMask,2)}")
            k(f"s_add_u32 {s(sK0)}, {s(sK0)}, 32")
        if do_qk: qc = qc + [maskpre, maskpre2]
        if do_qk: k("s_waitcnt lgkmcnt(0)")
        for sl in range(8):
            ds, kb = divmod(sl, 2)
            if do_qk:
                for qb in range(2):
                    D_ = v(sw + (kb * 2 + qb) * 4, 4)
                    C = v(vN + qb * 4, 4) if ds == 0 else D_
                    k(f"{MF} {D_}, {v(vF+sl*4,4)}, {v(vQ+(ds*2+qb)*4,4)}, {C}")
                if sl == 0: k("s_setprio 2")
                if sl == 7: k("s_setprio 0")
            rd(step_par, itpar, 8 + sl, do_qk, do_pv)
            if qa and sl % 2 == 1: qa.pop(0)()
        while qa: qa.pop(0)()
        for x in valu[:SPL]: k(x)
        for x in extra_b: k(x)
        if sync and not G0:
            vmwait()
            k("s_waitcnt lgkmcnt(0)")
            k("s_barrier")
        elif do_pv:
            k("s_waitcnt lgkmcnt(0)")
        if do_pv and ONES:
            for qb in range(2):
                acc = v(vLa + qb * 4, 4)
                k(f"{MF} {acc}, {v(vOne,4)}, {v(pr+qb*4,4)}, {acc}")
            k("s_setprio 2")
        for sl in range(8, 16):
            if do_pv:
                for qb in range(2):
                    acc = v(vO + ((sl - 8) * 2 + qb) * 4, 4)
                    k(f"{MF} {acc}, {v(vF+(sl-8)*4,4)}, {v(pr+qb*4,4)}, {acc}")
                if sl == 8 and not ONES: k("s_setprio 2")
                if sl == 15: k("s_setprio 0")
            if nxt and not (sync and G0): rd(nxt[0], nxt[1], sl - 8, nxt[2], nxt[3])
            if qc: qc.pop(0)()
        while qc: qc.pop(0)()
        if sync and G0:
            vmwait()
            k("s_barrier")
            for f in range(8): rd(nxt[0], nxt[1], f, nxt[2], nxt[3])
        for x in valu[SPL:] + mx: k(x)
        if 'noend' in exp: return
        ls, lsr = k.newlabel("slow"), k.newlabel("slowret")
        if do_qk:
            k(f"s_or_b64 {s(sTmp2,2)}, vcc, {s(sMask,2)}")
        else:
            k(f"s_or_b64 {s(sTmp2,2)}, {s(sForce,2)}, {s(sForce,2)}")
        k(f"s_cbranch_scc1 {ls}")
        k.label(lsr)
        tgt = (LS[step_par] if do_qk else LS[2])
        def stub(ls=ls, lsr=lsr, tgt=tgt):
            k.label(ls)
            k(f"s_call_b64 {s(sRet,2)}, {tgt}")
            k(f"s_branch {lsr}")
        ool.append(stub)
        if step_par == 1 and dma_carry and RP:
            l1, l1r = k.newlabel("rps"), k.newlabel("rpret")
            k(f"s_cmp_eq_u32 {s(sIt)}, {s(sRp)}")
            k(f"s_cbranch_scc1 {l1}")
            k.label(l1r)
            def stub2(l1=l1, l1r=l1r):
                k.label(l1)
                k(f"s_call_b64 {s(sRet,2)}, {LS[3]}")
                k(f"s_branch {l1r}")
            ool.append(stub2)

    def slow_routine(step_par, do_qk, do_sm, do_pv):
        sw = vS + (0 if step_par else 16)
        k.label(LS[step_par] if do_qk else LS[2])
        k("s_nop 7")
        k(f"s_mov_b64 {s(sForce,2)}, 0")
        l1 = k.newlabel("np")
        k(f"s_cmp_eq_u32 {s(sPend)}, 0")
        k(f"s_cbranch_scc1 {l1}")
        for i in range(NO): k(f"v_mul_f32 {v(vO+i)}, {v(vO+i)}, {v(vAl+(i//4)%2)}")
        k(f"s_mov_b32 {s(sPend)}, 0")
        k.label(l1)
        if step_par == 1 and do_sm:
            l2 = k.newlabel("nh2")
            k(f"s_cmp_lg_u32 {s(sIt)}, {s(sNBg)}")
            k(f"s_cbranch_scc1 {l2}")
            if not ONES:
                for qb in range(2):
                    k(f"v_mov_b32 {v(vLB+qb)}, {v(vL+qb)}")
                    k(f"v_mov_b32 {v(vL+qb)}, 0")
            k(f"s_mov_b32 {s(sH3)}, 1")
            k(f"s_mov_b64 {s(sForce,2)}, -1")
            k.label(l2)
        if step_par == 0 and do_pv:
            l3 = k.newlabel("nh3")
            k(f"s_cmp_eq_u32 {s(sH3)}, 0")
            k(f"s_cbranch_scc1 {l3}")
            k(f"s_mov_b32 {s(sH3)}, 0")
            for qb in range(2):
                if ONES: k(f"v_rcp_f32 {v(vLB+qb)}, {v(vLa+qb*4)}")
                else:
                    xreduce(vLB + qb, vT + 1, "v_add_f32")
                    k(f"v_rcp_f32 {v(vLB+qb)}, {v(vLB+qb)}")
            k(f"s_lshl_b32 {s(sT)}, {s(sP)}, 7")
            k(f"s_lshl_b32 {s(sCo)}, {s(sW4)}, 5")
            k(f"s_add_u32 {s(sT)}, {s(sT)}, {s(sCo)}")
            store_ctx(sT, range(4), vLB)
            for i in range(NO): k(f"v_mov_b32 {v(vO+i)}, 0")
            k.label(l3)
        if do_qk:
            l4, l4b, l5 = k.newlabel("nm"), k.newlabel("allm"), k.newlabel("nr")
            k(f"s_sub_u32 {s(sT)}, {s(sK0)}, 32")
            k(f"s_cmp_lt_u32 {s(sT)}, {s(sR0)}")
            k(f"s_cbranch_scc1 {l4}")
            k(f"v_mov_b32 {v(vT+2)}, 0xff800000")
            k(f"s_cmp_gt_u32 {s(sT)}, {s(sR0)}")
            k(f"s_cbranch_scc1 {l4b}")
            for j in range(4):
                k(f"v_cndmask_b32 {v(sw+j)}, {v(sw+j)}, {v(vT+2)}, {s(sDM+2*j,2)}")
                k(f"v_cndmask_b32 {v(sw+12+j)}, {v(sw+12+j)}, {v(vT+2)}, {s(sDM+2*j,2)}")
                k(f"v_mov_b32 {v(sw+8+j)}, {v(vT+2)}")
            k(f"s_branch {l4}")
            k.label(l4b)
            for j in range(16): k(f"v_mov_b32 {v(sw+j)}, {v(vT+2)}")
            k.label(l4)
            for qb in range(2):
                a0, a1 = sw + qb * 4, sw + (2 + qb) * 4
                k(f"v_max3_f32 {v(vT+3+qb)}, {v(a0)}, {v(a0+1)}, {v(a0+2)}")
                k(f"v_max3_f32 {v(vT+3+qb)}, {v(vT+3+qb)}, {v(a0+3)}, {v(a1)}")
                k(f"v_max3_f32 {v(vT+3+qb)}, {v(vT+3+qb)}, {v(a1+1)}, {v(a1+2)}")
                k(f"v_max_f32 {v(vT+3+qb)}, {v(vT+3+qb)}, {v(a1+3)}")
            k(f"v_max_f32 {v(vMax)}, {v(vT+3)}, {v(vT+4)}")
            k(f"v_cmp_lt_f32 vcc, {f32(THR)}, {v(vMax)}")
            lf, lj, lr = k.newlabel("first"), k.newlabel("join"), k.newlabel("resc")
            k(f"s_cmp_lg_u32 {s(sFirst)}, 0")
            k(f"s_cbranch_scc1 {lr}")
            k(f"s_cbranch_vccz {l5}")
            k.label(lr)
            for qb in range(2): xreduce(vT + 3 + qb, vT + 1, "v_max_f32")
            k(f"s_cmp_lg_u32 {s(sFirst)}, 0")
            k(f"s_cbranch_scc1 {lf}")
            for qb in range(2):
                k(f"v_max_f32 {v(vT+3+qb)}, 0, {v(vT+3+qb)}")
                k(f"v_sub_f32 {v(vAl+qb)}, 0, {v(vT+3+qb)}")
                k(f"v_exp_f32 {v(vAl+qb)}, {v(vAl+qb)}")
                if not ONES: k(f"v_mul_f32 {v(vL+qb)}, {v(vL+qb)}, {v(vAl+qb)}")
            k(f"s_mov_b32 {s(sPend)}, 1")
            k(f"s_mov_b64 {s(sForce,2)}, -1")
            k(f"s_branch {lj}")
            k.label(lf)
            k(f"s_mov_b32 {s(sFirst)}, 0")
            for qb in range(2):
                k(f"v_cmp_eq_f32 vcc, 0xff800000, {v(vT+3+qb)}")
                k(f"v_cndmask_b32 {v(vT+3+qb)}, {v(vT+3+qb)}, 0, vcc")
            k.label(lj)
            for qb in range(2):
                k(f"v_add_f32 {v(vM+qb)}, {v(vM+qb)}, {v(vT+3+qb)}")
                for kb in range(2):
                    for j in range(4):
                        r = sw + (kb * 2 + qb) * 4 + j
                        k(f"v_sub_f32 {v(r)}, {v(r)}, {v(vT+3+qb)}")
                for j in range(4): k(f"v_sub_f32 {v(vN+qb*4+j)}, 0, {v(vM+qb)}")
            k.label(l5)
            l7 = k.newlabel("ninf")
            k(f"s_cmp_le_u32 {s(sK0)}, {s(sR0)}")
            k(f"s_cbranch_scc1 {l7}")
            for r in range(8): k(f"v_mov_b32 {v(vN+r)}, 0xff800000")
            k.label(l7)
        if step_par == 0 and do_qk:
            l6 = k.newlabel("nh1")
            k(f"s_cmp_lg_u32 {s(sIt)}, {s(sNBg)}")
            k(f"s_cbranch_scc1 {l6}")
            k(f"s_add_u32 {s(sT)}, {s(sQo)}, 4096")
            for i in range(8):
                k(f"buffer_load_dwordx4 {v(vQ+4*i,4)}, {v(vL16)}, {s(S_XN,4)}, {s(sQo if i < 4 else sT)} offen offset:{1024*(i%4)} sc1")
            for r in range(8): k(f"v_mov_b32 {v(vN+r)}, 0")
            k(f"v_mov_b32 {v(vM)}, 0"); k(f"v_mov_b32 {v(vM+1)}, 0")
            k(f"s_mov_b32 {s(sFirst)}, 1")
            k(f"s_mov_b64 {s(sForce,2)}, -1")
            k(f"s_mov_b32 {s(sR0)}, {s(sRA)}")
            k(f"s_movk_i32 {s(sK0)}, {17*64}")
            k("s_waitcnt vmcnt(0)")
            k.label(l6)
        k("s_nop 1")
        k(f"s_setpc_b64 {s(sRet,2)}")

    def rp_routine():
        k.label(LS[3])
        l9, lsk = k.newlabel("rp1"), k.newlabel("rpskip")
        k(f"s_add_u32 {s(sRp)}, {s(sRp)}, 2")
        k(f"s_cmp_eq_u32 {s(sRS+1)}, -1")
        k(f"s_cbranch_scc1 {l9}")
        rp.phase2()
        k(f"s_mov_b32 {s(sVw)}, 4")
        k.label(l9)
        k(f"s_cmp_ge_u32 {s(sTask)}, {NTASK}")
        k(f"s_cbranch_scc1 {lsk}")
        rp.phase1(sTask)
        k(f"s_add_u32 {s(sTask)}, {s(sTask)}, 2048")
        k(f"s_add_u32 {s(sVw)}, {s(sVw)}, 4")
        k("s_nop 1")
        k(f"s_setpc_b64 {s(sRet,2)}")
        k.label(lsk)
        k(f"s_mov_b32 {s(sRp)}, 99")
        k("s_nop 1")
        k(f"s_setpc_b64 {s(sRet,2)}")

    def store_ctx(row_sgpr, dss, vscale):
        k(f"s_lshl_b32 {s(sCo)}, {s(row_sgpr)}, 13")
        k(f"s_lshl_b32 {s(sXo)}, {s(sH)}, 12")
        k(f"s_add_u32 {s(sCo)}, {s(sCo)}, {s(sXo)}")
        k(f"s_add_u32 {s(sXo)}, {s(sCo)}, {128*1024}")
        for ds in dss:
            for qb in range(2):
                o0, o1 = vO + ((2 * ds) * 2 + qb) * 4, vO + ((2 * ds + 1) * 2 + qb) * 4
                for j in range(4):
                    k(f"v_mul_f32 {v(o0+j)}, {v(o0+j)}, {v(vscale+qb)}")
                    k(f"v_mul_f32 {v(o1+j)}, {v(o1+j)}, {v(vscale+qb)}")
                k(f"v_cvt_pk_bf16_f32 {v(o0)}, {v(o0)}, {v(o0+1)}")
                k(f"v_cvt_pk_bf16_f32 {v(o0+1)}, {v(o0+2)}, {v(o0+3)}")
                k(f"v_cvt_pk_bf16_f32 {v(o0+2)}, {v(o1)}, {v(o1+1)}")
                k(f"v_cvt_pk_bf16_f32 {v(o0+3)}, {v(o1+2)}, {v(o1+3)}")
                k(f"buffer_store_dwordx4 {v(o0,4)}, {v(vL16)}, {s(S_C,4)}, {s(sCo if qb == 0 else sXo)} offen offset:{ds*1024}")

    lgrp1, ljoin = k.newlabel("grp1"), k.newlabel("grpjoin")
    k(f"s_cmp_lg_u32 {s(sG)}, 0")
    k(f"s_cbranch_scc1 {lgrp1}")
    zero = [f"v_mov_b32 {v(vO+i)}, 0" for i in range(NO)] + [f"v_mov_b32 {v(vOne+i)}, 0x3f803f80" for i in range(4)]
    for grp in (0, 1):
        if grp == 1: k.label(lgrp1)
        else:
            k(f"s_add_u32 {s(sT)}, {s(sQo)}, 4096")
            for i in range(8):
                k(f"buffer_store_dwordx4 {v(vQ+4*i,4)}, {v(vL16)}, {s(S_XN,4)}, {s(sQo if i < 4 else sT)} offen offset:{1024*(i%4)}")
        step(1, 0, True, False, False, False, (0, 0, True, False), grp=grp, extra_b=zero)
        step(0, 0, True, True, False, True, (1, 1, True, True), grp=grp)
        loop = k.newlabel("loop")
        k.label(loop)
        for itpar in (1, 0):
            step(1, itpar, True, True, True, False, (0, itpar, True, True), dma_carry=True, grp=grp)
            step(0, itpar, True, True, True, True, (1, 1 - itpar, True, True), grp=grp)
        k(f"s_cmp_lt_u32 {s(sIt)}, 17")
        k(f"s_cbranch_scc1 {loop}")
        k.check_loop(loop)
        k("s_waitcnt lgkmcnt(0)")
        step(1, 1, False, True, True, False, (0, 1, False, True), grp=grp)
        step(0, 1, False, False, True, False, None, grp=grp)
        if grp == 0: k(f"s_branch {ljoin}")
    k.label(ljoin)
    k("s_nop 7")
    k("s_waitcnt vmcnt(0)")
    k("s_barrier")
    for qb in range(2):
        if ONES: k(f"v_mov_b32 {v(vL+qb)}, {v(vLa+qb*4)}")
        else: xreduce(vL + qb, vT + 1, "v_add_f32")
        k(f"v_cmp_eq_f32 vcc, 0, {v(vL+qb)}")
        k(f"v_mov_b32 {v(vT+1)}, {f32(-1e30)}")
        k(f"v_cndmask_b32 {v(vLB+qb)}, {v(vM+qb)}, {v(vT+1)}, vcc")
    k(f"s_mul_i32 {s(sT)}, {s(sWV)}, 9216")
    k(f"v_add_u32 {v(vT)}, {s(sT)}, {v(vL16)}")
    k(f"s_xor_b32 {s(sT2)}, {s(sWV)}, 4")
    k(f"s_mul_i32 {s(sT2)}, {s(sT2)}, 9216")
    k(f"v_add_u32 {v(vT+1)}, {s(sT2)}, {v(vL16)}")
    k(f"ds_write_b128 {v(vT)}, {v(vL,4)} offset:8192")
    lg1, lgj = k.newlabel("mg1"), k.newlabel("mgj")
    k(f"s_cmp_lg_u32 {s(sG)}, 0")
    k(f"s_cbranch_scc1 {lg1}")
    def merge(own, other):
        for i in range(8):
            k(f"ds_write_b128 {v(vT)}, {v(vO+other*32+4*i,4)} offset:{1024*i}")
        k("s_waitcnt lgkmcnt(0)")
        k("s_barrier")
        X = vP
        k(f"ds_read_b128 {v(X,4)}, {v(vT+1)} offset:8192")
        for i in range(8):
            k(f"ds_read_b128 {v(vS+4*i,4)}, {v(vT+1)} offset:{1024*i}")
        k("s_waitcnt lgkmcnt(8)")
        for qb in range(2):
            k(f"v_max_f32 {v(vM+qb)}, {v(vLB+qb)}, {v(X+2+qb)}")
            k(f"v_sub_f32 {v(vLB+qb)}, {v(vLB+qb)}, {v(vM+qb)}")
            k(f"v_sub_f32 {v(X+2+qb)}, {v(X+2+qb)}, {v(vM+qb)}")
            k(f"v_exp_f32 {v(vLB+qb)}, {v(vLB+qb)}")
            k(f"v_exp_f32 {v(X+2+qb)}, {v(X+2+qb)}")
            k(f"v_mul_f32 {v(vL+qb)}, {v(vL+qb)}, {v(vLB+qb)}")
            k(f"v_fmac_f32 {v(vL+qb)}, {v(X+qb)}, {v(X+2+qb)}")
            k(f"v_rcp_f32 {v(vL+qb)}, {v(vL+qb)}")
        k("s_waitcnt lgkmcnt(0)")
        for i in range(32):
            qb = (i // 4) % 2
            k(f"v_mul_f32 {v(vO+own*32+i)}, {v(vO+own*32+i)}, {v(vLB+qb)}")
            k(f"v_fmac_f32 {v(vO+own*32+i)}, {v(vS+i)}, {v(X+2+qb)}")
        store_ctx(sRA, (2 * own, 2 * own + 1), vL)
    merge(0, 1)
    k(f"s_branch {lgj}")
    k.label(lg1)
    merge(1, 0)
    k.label(lgj)
    st_.dump(sWS, sWV, 200 * MB, vT, srd_base=60)
    k.label(done)
    k("s_endpgm")
    i = 0
    while i < len(ool):
        ool[i](); i += 1
    if 'noend' not in exp:
        slow_routine(0, True, True, True); slow_routine(1, True, True, True); slow_routine(1, False, False, False)
        if RP: rp_routine()
    return k, nv, 163840, 0
```

```python
from asmlib import *
from layout import *
from k_sg2 import srd

def gen_ffnup(name, exp=''):
    k = Kernel(name)
    NKS = 18
    NSL = 6
    STG = 26 * 1024
    PH = [[0, 4, 1, 5], [2, 6, 3, 7, 8]]
    MF = "v_mfma_f32_16x16x32_bf16"
    S_X, S_W, S_A, S_C = 8, 12, 16, 20
    sWS = 24
    sMB, sFT, sWV, sRG, sCG, sT, sT2, sXo, sWa, sWb, sWq, sL0, sLw, sLq, sAo, sAo2 = range(26, 42)
    vLane, vL16, vL4, vD2, vT = 1, 2, 3, 4, 5
    vXr, vWr = 9, 12
    vPr = 16
    vCS = 32
    vX = 68
    vW = 100
    vAcc = 112
    st_ = Stamps(k, 'stamp' in exp)
    done = k.newlabel("done")
    k(f"s_cmp_ge_u32 s2, 256")
    k(f"s_cbranch_scc1 {done}")
    st_.stamp(True); st_.stamp()
    k(f"s_load_dwordx2 {s(sWS,2)}, s[0:1], 96")
    k(f"v_lshrrev_b32 {v(vT)}, 6, v0")
    k(f"v_and_b32 {v(vLane)}, 63, v0")
    k(f"v_readfirstlane_b32 {s(sWV)}, {v(vT)}")
    k(f"s_and_b32 {s(sFT)}, s2, 7")
    k(f"s_lshl_b32 {s(sFT)}, {s(sFT)}, 2")
    k(f"s_lshr_b32 {s(sT)}, s2, 3")
    k(f"s_and_b32 {s(sT2)}, {s(sT)}, 3")
    k(f"s_add_u32 {s(sFT)}, {s(sFT)}, {s(sT2)}")
    k(f"s_lshr_b32 {s(sMB)}, {s(sT)}, 2")
    k(f"s_and_b32 {s(sRG)}, {s(sWV)}, 3")
    k(f"s_lshr_b32 {s(sCG)}, {s(sWV)}, 2")
    k(f"v_lshlrev_b32 {v(vL16)}, 4, {v(vLane)}")
    k(f"v_lshlrev_b32 {v(vL4)}, 2, {v(vLane)}")
    k(f"v_add_u32 {v(vD2)}, {18432-1024}, {v(vL16)}")
    k(f"s_lshl_b32 {s(sXo)}, {s(sMB)}, 4")
    k(f"s_lshl_b32 {s(sT)}, {s(sWV)}, 1")
    k(f"s_add_u32 {s(sXo)}, {s(sXo)}, {s(sT)}")
    k(f"s_mul_i32 {s(sXo)}, {s(sXo)}, 18432")
    k(f"s_lshl_b32 {s(sL0)}, {s(sWV)}, 11")
    k(f"s_mul_i32 {s(sT)}, {s(sFT)}, 18")
    k(f"s_mul_i32 {s(sT2)}, {s(sCG)}, 9")
    k(f"s_add_u32 {s(sT)}, {s(sT)}, {s(sT2)}")
    k(f"s_add_u32 {s(sWq)}, {s(sT)}, 8")
    k(f"s_and_b32 {s(sT2)}, {s(sRG)}, 1")
    k(f"s_lshl_b32 {s(sT2)}, {s(sT2)}, 2")
    k(f"s_add_u32 {s(sWa)}, {s(sT)}, {s(sT2)}")
    k(f"s_lshr_b32 {s(sT2)}, {s(sRG)}, 1")
    k(f"s_add_u32 {s(sWa)}, {s(sWa)}, {s(sT2)}")
    k(f"s_mul_i32 {s(sWa)}, {s(sWa)}, 18432")
    k(f"s_add_u32 {s(sWb)}, {s(sWa)}, {2*18432}")
    k(f"s_mul_i32 {s(sWq)}, {s(sWq)}, 18432")
    k(f"s_lshl_b32 {s(sT2)}, {s(sRG)}, 8")
    k(f"s_add_u32 {s(sWq)}, {s(sWq)}, {s(sT2)}")
    k(f"s_mul_i32 {s(sLw)}, {s(sCG)}, 5120")
    k(f"s_add_u32 {s(sLw)}, {s(sLw)}, 16384")
    k(f"s_add_u32 {s(sLq)}, {s(sLw)}, 4096")
    k(f"s_add_u32 {s(sLq)}, {s(sLq)}, {s(sT2)}")
    k(f"v_add_u32 {v(vWr)}, {s(sLw)}, {v(vL16)}")
    k(f"s_lshl_b32 {s(sT2)}, {s(sRG)}, 10")
    k(f"s_add_u32 {s(sLw)}, {s(sLw)}, {s(sT2)}")
    k(f"s_lshl_b32 {s(sT2)}, {s(sRG)}, 12")
    k(f"v_add_u32 {v(vXr)}, {s(sT2)}, {v(vL16)}")
    k(f"s_lshl_b32 {s(sAo)}, {s(sT)}, 6")
    k(f"s_waitcnt lgkmcnt(0)")
    srd(k, S_X, sWS, WS_HF, 128 * 18432)
    srd(k, S_W, sWS, WS_WGU, 576 * 18432)
    vm = []
    def vm_need(tags):
        idx = max((i for i, x in enumerate(vm) if x in tags), default=-1)
        if idx >= 0:
            k(f"s_waitcnt vmcnt({len(vm)-1-idx})")
            del vm[:idx + 1]
    def dma(u):
        ph, ks = divmod(u, NKS)
        sl = u % NSL
        k(f"s_add_u32 m0, {s(sL0)}, {sl*STG}")
        k(f"s_add_u32 {s(sT)}, {s(sXo)}, {ks*1024}")
        k(f"buffer_load_dwordx4 {v(vL16)}, {s(S_X,4)}, {s(sT)} offen lds")
        k(f"buffer_load_dwordx4 {v(vD2)}, {s(S_X,4)}, {s(sT)} offen offset:1024 lds")
        k(f"s_add_u32 m0, {s(sLw)}, {sl*STG}")
        k(f"s_add_u32 {s(sT)}, {s(sWb if ph else sWa)}, {ks*1024}")
        k(f"buffer_load_dwordx4 {v(vL16)}, {s(S_W,4)}, {s(sT)} offen lds")
        vm.extend([('d', u)] * 3)
        if ph:
            k(f"s_add_u32 m0, {s(sLq)}, {sl*STG}")
            k(f"s_add_u32 {s(sT)}, {s(sWq)}, {ks*1024}")
            k(f"buffer_load_dword {v(vL4)}, {s(S_W,4)}, {s(sT)} offen lds")
            vm.append(('d', u))
    dma(0); dma(1)
    srd(k, S_C, sWS, WS_STAT, WS_CS - WS_STAT + 576 * 64)
    srd(k, S_A, sWS, WS_ACT, 128 * 144 * 1024)
    for i in (1, 2):
        k(f"v_add_u32 {v(vXr+i)}, {2*i*STG}, {v(vXr)}")
        k(f"v_add_u32 {v(vWr+i)}, {2*i*STG}, {v(vWr)}")
    vS = vAcc + 128
    def side_loads():
        k(f"v_and_b32 {v(vT+1)}, 15, {v(vLane)}")
        k(f"v_lshlrev_b32 {v(vT+1)}, 6, {v(vT+1)}")
        k(f"v_lshrrev_b32 {v(vT+2)}, 4, {v(vLane)}")
        k(f"v_lshlrev_b32 {v(vT+2)}, 4, {v(vT+2)}")
        k(f"v_add_u32 {v(vT+1)}, {v(vT+1)}, {v(vT+2)}")
        k(f"s_lshl_b32 {s(sT)}, {s(sMB)}, 14")
        k(f"s_lshl_b32 {s(sT2)}, {s(sRG)}, 12")
        k(f"s_add_u32 {s(sT)}, {s(sT)}, {s(sT2)}")
        for rb in range(4):
            k(f"buffer_load_dwordx4 {v(vS+rb*4,4)}, {v(vT+1)}, {s(S_C,4)}, {s(sT)} offen offset:{rb*1024}")
        k(f"s_add_u32 {s(sT)}, {s(sAo)}, {WS_CS-WS_STAT}")
        for b in range(9):
            k(f"buffer_load_dwordx4 {v(vCS+b*4,4)}, {v(vT+2)}, {s(S_C,4)}, {s(sT)} offen offset:{b*64}")
        vm.extend([('sl',)] * 13)
    def stat_ops():
        o = []
        o += [f"s_lshl_b32 {s(sAo)}, {s(sMB)}, 4", f"s_lshl_b32 {s(sT2)}, {s(sRG)}, 2", f"s_add_u32 {s(sAo)}, {s(sAo)}, {s(sT2)}", f"s_mul_i32 {s(sAo)}, {s(sAo)}, 144",
              f"s_lshl_b32 {s(42)}, {s(sFT)}, 1", f"s_add_u32 {s(42)}, {s(42)}, {s(sCG)}",
              f"s_lshr_b32 {s(sAo2)}, {s(42)}, 2", f"s_add_u32 {s(sAo2)}, {s(sAo2)}, 128", f"s_add_u32 {s(sAo2)}, {s(sAo2)}, {s(sAo)}", f"s_lshl_b32 {s(sAo2)}, {s(sAo2)}, 10",
              f"s_and_b32 {s(sT2)}, {s(42)}, 1", f"s_lshl_b32 {s(sT2)}, {s(sT2)}, 9", f"s_add_u32 {s(sAo2)}, {s(sAo2)}, {s(sT2)}",
              f"s_bfe_u32 {s(sT2)}, {s(42)}, 0x10001", f"s_lshl_b32 {s(sT2)}, {s(sT2)}, 3", f"s_add_u32 {s(sAo2)}, {s(sAo2)}, {s(sT2)}",
              f"s_lshl_b32 {s(42)}, {s(42)}, 1", f"s_add_u32 {s(sAo)}, {s(sAo)}, {s(42)}", f"s_lshl_b32 {s(sAo)}, {s(sAo)}, 10"]
        for rb in range(4):
            b = vS + rb * 4
            o.append(f"v_add_f32 {v(b)}, {v(b)}, {v(b+2)}")
            o.append(f"v_add_f32 {v(b+1)}, {v(b+1)}, {v(b+3)}")
            for sw in ("v_permlane16_swap_b32", "v_permlane32_swap_b32"):
                o += [f"v_mov_b32 {v(b+2)}, {v(b)}", f"v_mov_b32 {v(b+3)}, {v(b+1)}", f"{sw} {v(b)}, {v(b+2)}", f"{sw} {v(b+1)}, {v(b+3)}",
                      f"v_add_f32 {v(b)}, {v(b)}, {v(b+2)}", f"v_add_f32 {v(b+1)}, {v(b+1)}, {v(b+3)}"]
            o += [f"v_mul_f32 {v(b)}, 0x3ae38e39, {v(b)}", f"v_mul_f32 {v(b+1)}, 0x3ae38e39, {v(b+1)}",
                  f"v_fma_f32 {v(b+1)}, -{v(b)}, {v(b)}, {v(b+1)}", f"v_max_f32 {v(b+1)}, 0, {v(b+1)}", f"v_add_f32 {v(b+1)}, 0x3727c5ac, {v(b+1)}",
                  f"v_rcp_f32 {v(vPr+4*rb+1)}, {v(b+1)}", f"v_rsq_f32 {v(b+2)}, {v(b+1)}", f"v_sub_f32 {v(vPr+4*rb)}, 0, {v(b)}",
                  f"v_mov_b32 {v(vPr+4*rb+3)}, 1.0", f"v_mul_f32 {v(vPr+4*rb+2)}, 0xbfb8aa3b, {v(b+2)}"]
        return o
    def acc_of(slot, rb): return vAcc + (slot * 4 + rb) * 4
    def epi_scalar(pairs):
        o = []
        for rb in range(4):
            nm, r2, ea = v(vPr+4*rb), v(vPr+4*rb+1), v(vPr+4*rb+2)
            for b in pairs:
                G, U = acc_of(b, rb), acc_of(4 + b, rb)
                for j in range(4):
                    o.append(f"v_fmac_f32 {v(G+j)}, {nm}, {v(vCS+b*4+j)}")
                    o.append(f"v_fmac_f32 {v(U+j)}, {nm}, {v(vCS+(4+b)*4+j)}")
                for j in range(4): o.append(f"v_mul_f32 {v(U+j)}, {v(G+j)}, {v(U+j)}")
                for j in range(4): o.append(f"v_mul_f32 {v(G+j)}, {ea}, {v(G+j)}")
                for j in range(4): o.append(f"v_exp_f32 {v(G+j)}, {v(G+j)}")
                for j in range(4): o.append(f"v_mul_f32 {v(U+j)}, {r2}, {v(U+j)}")
                for j in range(4): o.append(f"v_add_f32 {v(G+j)}, 1.0, {v(G+j)}")
                for j in range(4): o.append(f"v_rcp_f32 {v(G+j)}, {v(G+j)}")
                o.append("s_nop 0")
                for j in range(4): o.append(f"v_mul_f32 {v(U+j)}, {v(U+j)}, {v(G+j)}")
                D = acc_of(pairs[0], rb)
                h = 2 * (b - pairs[0])
                o.append(f"v_cvt_pk_bf16_f32 {v(D+h)}, {v(U)}, {v(U+1)}")
                o.append(f"v_cvt_pk_bf16_f32 {v(D+h+1)}, {v(U+2)}, {v(U+3)}")
            o.append(f"s_add_u32 {s(42)}, {s(sAo)}, {rb*144*1024}")
            o.append(("st", f"buffer_store_dwordx4 {v(acc_of(pairs[0], rb),4)}, {v(vL16)}, {s(S_A,4)}, {s(42)} offen offset:{1024*(pairs[0]//2)}"))
        return o
    def emit(x):
        if isinstance(x, tuple): k(x[1]); vm.append(('st',))
        else: k(x)
    vm_need([('d', 0), ('d', 1)] if 'sync2' in exp else [('d', 0)])
    k("s_barrier")
    st_.stamp()
    NU = 2 * NKS
    wl = [(u, i) for u in range(NU) for i in range(len(PH[u // NKS]))]
    widx = {x: n for n, x in enumerate(wl)}
    pend = []
    def rdx(u, rb):
        sl = u % NSL
        k(f"ds_read_b128 {v(vX+(u%2)*16+rb*4,4)}, {v(vXr+sl//2)} offset:{(sl%2)*STG + rb*1024}")
        pend.append(('x', u, rb))
    def rdw(g):
        if g >= len(wl): return
        u, i = wl[g]; sl = u % NSL
        k(f"ds_read_b128 {v(vW+(g%3)*4,4)}, {v(vWr+sl//2)} offset:{(sl%2)*STG + i*1024}")
        pend.append(('w', g))
    def need(tag):
        if tag in pend:
            i = pend.index(tag)
            k(f"s_waitcnt lgkmcnt({len(pend)-1-i})")
            del pend[:i + 1]
    for rb in range(4): rdx(0, rb)
    rdw(0); rdw(1)
    side = []
    DIST = 5
    for u in range(NU):
        ph, ks = divmod(u, NKS)
        nb = len(PH[ph])
        if u == 8: vm_need([('sl',)]); side += stat_ops()
        if u in (6, NKS): st_.stamp()
        if u == NKS: side += epi_scalar([0, 1])
        for i in range(nb):
            g = widx[(u, i)]
            if 'sync2' in exp:
                if i == 1 and u % 2 == 1 and u + 1 < NU:
                    vm_need([('d', u + 1), ('d', u + 2)])
                    k("s_barrier")
            elif i == 1 and u + 1 < NU:
                vm_need([('d', u + 1)])
                k("s_barrier")
            need(('w', g))
            for rb in range(4):
                if i == 0: need(('x', u, rb))
                acc = v(acc_of(PH[ph][i], rb), 4)
                k(f"{MF} {acc}, {v(vW+(g%3)*4,4)}, {v(vX+(u%2)*16+rb*4,4)}, {acc if ks else 0}")
                if rb == 0: rdw(g + 2)
                if i in (1, 2) and rb in (1, 3) and u + 1 < NU: rdx(u + 1, (i - 1) * 2 + rb // 2)
                if side and not (u == NKS and i == 0): emit(side.pop(0))
            if u == 0 and i == 0: dma(2); dma(3)
            if u == 0 and i == 2: dma(4)
            if 'sync2' in exp:
                if u % 2 == 1 and i == 1 and u + 4 < NU and u > 1: dma(u + 4 - 0) if False else None
                if u % 2 == 1 and i == 1 and u + 4 < NU: dma(u + 4)
                if u % 2 == 1 and i == 3 and u + 5 < NU: dma(u + 5)
            elif i == 1 and u + DIST < NU: dma(u + DIST)
            if u == 2 and i == 2: side_loads()
    st_.stamp()
    while side: emit(side.pop(0))
    vE = vX
    B0 = "op_sel:[0,0,0] op_sel_hi:[0,1,1]"
    k(f"v_cmp_gt_u32 vcc, 32, {v(vLane)}")
    k(f"v_mov_b32 {v(vT+1)}, 0x7f000000")
    k(f"v_cndmask_b32 {v(vT+1)}, {v(vT+1)}, {v(vL16)}, vcc")
    def act4(G, U, E, P0, P1, out):
        for h in (0, 2): k(f"v_pk_mul_f32 {v(E+h,2)}, {P1}, {v(G+h,2)} op_sel:[0,0] op_sel_hi:[0,1]")
        for j in range(4): k(f"v_exp_f32 {v(E+j)}, {v(E+j)}")
        for h in (0, 2): k(f"v_pk_mul_f32 {v(G+h,2)}, {v(G+h,2)}, {v(U+h,2)}")
        for h in (0, 2): k(f"v_pk_add_f32 {v(E+h,2)}, {P1}, {v(E+h,2)} op_sel:[1,0] op_sel_hi:[1,1]")
        for j in range(4): k(f"v_rcp_f32 {v(E+j)}, {v(E+j)}")
        for h in (0, 2): k(f"v_pk_mul_f32 {v(G+h,2)}, {P0}, {v(G+h,2)} op_sel:[1,0] op_sel_hi:[1,1]")
        for h in (0, 2): k(f"v_pk_mul_f32 {v(G+h,2)}, {v(G+h,2)}, {v(E+h,2)}")
        for h in (0, 2): k(f"v_cvt_pk_bf16_f32 {v(out+h//2)}, {v(G+h)}, {v(G+h+1)}")
    n = 0
    for rb in range(4):
        P0, P1 = v(vPr+4*rb, 2), v(vPr+4*rb+2, 2)
        ob = vE + 16 + (rb % 2) * 8
        for b in (2, 3):
            G, U = acc_of(b, rb), acc_of(4 + b, rb)
            for h in (0, 2):
                k(f"v_pk_fma_f32 {v(G+h,2)}, {P0}, {v(vCS+b*4+h,2)}, {v(G+h,2)} {B0}")
                k(f"v_pk_fma_f32 {v(U+h,2)}, {P0}, {v(vCS+(4+b)*4+h,2)}, {v(U+h,2)} {B0}")
            act4(G, U, vE + (n % 3) * 4, P0, P1, ob + 2 * (b - 2)); n += 1
        k(f"buffer_store_dwordx4 {v(ob,4)}, {v(vL16)}, {s(S_A,4)}, {s(sAo)} offen offset:1024")
        G = acc_of(8, rb); U = vE + 12
        for h in (0, 2):
            k(f"v_pk_fma_f32 {v(G+h,2)}, {P0}, {v(vCS+32+h,2)}, {v(G+h,2)} {B0}")
        for j in range(4): k(f"v_mov_b32 {v(U+j)}, {v(G+j)}")
        for j in range(4): k(f"v_permlane32_swap_b32 {v(G+j)}, {v(U+j)}")
        act4(G, U, vE + (n % 3) * 4, P0, P1, ob + 4); n += 1
        k(f"buffer_store_dwordx2 {v(ob+4,2)}, {v(vT+1)}, {s(S_A,4)}, {s(sAo2)} offen")
        if rb < 3:
            k(f"s_add_u32 {s(sAo)}, {s(sAo)}, {144*1024}")
            k(f"s_add_u32 {s(sAo2)}, {s(sAo2)}, {144*1024}")
    st_.stamp()
    st_.dump(sWS, sWV, 200 * MB, vT)
    k.label(done)
    k("s_endpgm")
    return k, 256, NSL * STG, 0
```

```python
from asmlib import *
from layout import *
from k_sg2 import srd

def gen_kv(name, exp=''):
    k = Kernel(name)
    NT = 16
    XSL, WSL = 32768, 16384
    WBASE = 3 * XSL
    S_X, S_WK, S_WV, S_O, S_W, S_XI = 8, 12, 16, 20, 24, 28
    sWS, sCp, sKp, sVp, sXp = 32, 34, 36, 38, 40
    sMB, sH, sWV, sRG, sCG, sT, sT2, sXo, sWo, sLx, sLw, sOo = range(42, 54)
    vLane, vXd, vXd2, vWd, vWd2, vXr0, vXr1, vT = 1, 2, 3, 4, 5, 6, 7, 8
    vWa = 16
    vWf = 20
    vXf = 52
    vAcc = 68
    nv = 248
    st_ = Stamps(k, 'stamp' in exp)
    done = k.newlabel("done")
    k(f"s_cmp_ge_u32 s2, 256")
    k(f"s_cbranch_scc1 {done}")
    st_.stamp(True); st_.stamp()
    k(f"s_load_dwordx2 {s(sWS,2)}, s[0:1], 96")
    k(f"s_load_dwordx2 {s(sCp,2)}, s[0:1], 8")
    k(f"s_load_dwordx2 {s(sKp,2)}, s[0:1], 24")
    k(f"s_load_dwordx2 {s(sVp,2)}, s[0:1], 32")
    k(f"s_load_dwordx2 {s(sXp,2)}, s[0:1], 0")
    k(f"s_load_dwordx2 {s(84,2)}, s[0:1], 16")
    k(f"s_load_dwordx2 {s(86,2)}, s[0:1], 40")
    k(f"s_load_dwordx4 {s(88,4)}, s[0:1], 56")
    k(f"s_load_dwordx2 {s(92,2)}, s[0:1], 72")
    k(f"v_lshrrev_b32 {v(vT)}, 6, v0")
    k(f"v_and_b32 {v(vLane)}, 63, v0")
    k(f"v_readfirstlane_b32 {s(sWV)}, {v(vT)}")
    k(f"s_and_b32 {s(sMB)}, s2, 1")
    k(f"s_lshl_b32 {s(sMB)}, {s(sMB)}, 2")
    k(f"s_lshr_b32 {s(sT)}, s2, 3")
    k(f"s_and_b32 {s(sT2)}, {s(sT)}, 3")
    k(f"s_add_u32 {s(sMB)}, {s(sMB)}, {s(sT2)}")
    k(f"s_bfe_u32 {s(sH)}, s2, 0x20001")
    k(f"s_lshl_b32 {s(sH)}, {s(sH)}, 3")
    k(f"s_lshr_b32 {s(sT)}, {s(sT)}, 2")
    k(f"s_add_u32 {s(sH)}, {s(sH)}, {s(sT)}")
    k(f"s_and_b32 {s(sRG)}, {s(sWV)}, 1")
    k(f"s_lshr_b32 {s(sCG)}, {s(sWV)}, 1")
    k(f"v_lshrrev_b32 {v(vT)}, 3, {v(vLane)}")
    k(f"v_and_b32 {v(vT+1)}, 7, {v(vLane)}")
    k(f"v_xor_b32 {v(vT+1)}, {v(vT+1)}, {v(vT)}")
    k(f"v_lshlrev_b32 {v(vT)}, 10, {v(vT)}")
    k(f"v_lshl_add_u32 {v(vXd)}, {v(vT+1)}, 4, {v(vT)}")
    k(f"v_add_u32 {v(vXd2)}, {8192-1024}, {v(vXd)}")
    k(f"s_lshl_b32 {s(sXo)}, {s(sMB)}, 18")
    k(f"s_lshl_b32 {s(sT)}, {s(sWV)}, 14")
    k(f"s_add_u32 {s(sXo)}, {s(sXo)}, {s(sT)}")
    k(f"s_lshl_b32 {s(sLx)}, {s(sWV)}, 11")
    k(f"v_lshrrev_b32 {v(vT)}, 4, {v(vLane)}")
    k(f"s_and_b32 {s(sT)}, {s(sWV)}, 1")
    k(f"s_lshl_b32 {s(sT)}, {s(sT)}, 2")
    k(f"v_or_b32 {v(vT+1)}, {s(sT)}, {v(vT)}")
    k(f"v_bfe_u32 {v(vT+2)}, {v(vLane)}, 1, 3")
    k(f"v_xor_b32 {v(vT+1)}, {v(vT+1)}, {v(vT+2)}")
    k(f"v_lshlrev_b32 {v(vT)}, 13, {v(vT)}")
    k(f"v_lshl_add_u32 {v(vT)}, {v(vT+1)}, 5, {v(vT)}")
    k(f"v_and_b32 {v(vT+1)}, 1, {v(vLane)}")
    k(f"v_lshl_add_u32 {v(vWd)}, {v(vT+1)}, 4, {v(vT)}")
    k(f"v_add_u32 {v(vWd2)}, {32768-1024}, {v(vWd)}")
    k(f"s_and_b32 {s(sWo)}, {s(sWV)}, 3")
    k(f"s_lshl_b32 {s(sWo)}, {s(sWo)}, 16")
    k(f"s_lshl_b32 {s(sT)}, {s(sH)}, 8")
    k(f"s_add_u32 {s(sWo)}, {s(sWo)}, {s(sT)}")
    k(f"s_add_u32 {s(sLw)}, {s(sLx)}, {WBASE}")
    k(f"s_waitcnt lgkmcnt(0)")
    if 'fine' in exp: st_.stamp()
    srd(k, S_X, sCp, 0, 2048 * 1024)
    k(f"s_cmp_ge_u32 {s(sWV)}, 4")
    k(f"s_cselect_b32 {s(S_W)}, {s(sVp)}, {s(sKp)}")
    k(f"s_cselect_b32 {s(S_W+1)}, {s(sVp+1)}, {s(sKp+1)}")
    k(f"s_mov_b32 {s(S_W+2)}, {512*8192}")
    k(f"s_mov_b32 {s(S_W+3)}, 0x00020000")

    def dma_w(t):
        k(f"s_add_u32 m0, {s(sLw)}, {(t%4)*WSL}")
        k(f"buffer_load_dwordx4 {v(vWd)}, {s(S_W,4)}, {s(sWo)} offen lds")
        k(f"buffer_load_dwordx4 {v(vWd2)}, {s(S_W,4)}, {s(sWo)} offen offset:1024 lds")
        k(f"s_add_u32 {s(sWo)}, {s(sWo)}, {32*8192}")
    def dma_x(j, half):
        k(f"s_add_u32 m0, {s(sLx)}, {(j%3)*XSL + half*16384}")
        k(f"s_add_u32 {s(sT)}, {s(sXo)}, {half*128*1024 + j*128}")
        k(f"buffer_load_dwordx4 {v(vXd)}, {s(S_X,4)}, {s(sT)} offen lds")
        k(f"buffer_load_dwordx4 {v(vXd2)}, {s(S_X,4)}, {s(sT)} offen offset:1024 lds")
    vm = []
    def D_w(t): dma_w(t); vm.extend([('w', t)] * 2)
    def D_x(j, h): dma_x(j, h); vm.extend([('x', j, h)] * 2)
    def vm_need(tags):
        idx = max((i for i, x in enumerate(vm) if x in tags), default=-1)
        if idx >= 0:
            k(f"s_waitcnt vmcnt({len(vm)-1-idx})")
            del vm[:idx + 1]
    D_x(0, 0); D_x(0, 1); D_w(0)

    srd(k, S_O, sWS, WS_K, 32 * MB)
    k(f"v_and_b32 {v(vT)}, 15, {v(vLane)}")
    k(f"v_lshrrev_b32 {v(vT+1)}, 4, {v(vLane)}")
    k(f"v_and_b32 {v(vT+2)}, 7, {v(vLane)}")
    k(f"v_xor_b32 {v(vT+1)}, {v(vT+1)}, {v(vT+2)}")
    k(f"v_lshlrev_b32 {v(vT)}, 7, {v(vT)}")
    k(f"v_lshl_add_u32 {v(vXr0)}, {v(vT+1)}, 4, {v(vT)}")
    k(f"s_lshl_b32 {s(sT)}, {s(sRG)}, 14")
    k(f"v_add_u32 {v(vXr0)}, {s(sT)}, {v(vXr0)}")
    k(f"v_xor_b32 {v(vXr1)}, 64, {v(vXr0)}")
    for isv in (0, 1):
        for tt in (0, 1):
            ad = []
            for l in range(64):
                m, g = l % 16, l // 16
                row = m
                ad.append(row * 128 + (((4 * tt + g) ^ (row & 7)) * 16))
            assert conflicts('b128', ad) == 0
    vXr2, vXr3 = vT + 6, vT + 7
    k(f"v_add_u32 {v(vXr2)}, {2*XSL}, {v(vXr0)}")
    k(f"v_add_u32 {v(vXr3)}, {2*XSL}, {v(vXr1)}")
    k(f"v_lshrrev_b32 {v(vT)}, 4, {v(vLane)}")
    k(f"v_bfe_u32 {v(vT+1)}, {v(vLane)}, 2, 2")
    k(f"v_lshl_add_u32 {v(vT+2)}, {v(vT)}, 3, {v(vT+1)}")
    k(f"v_and_b32 {v(vT)}, 1, {v(vT)}")
    k(f"v_lshl_or_b32 {v(vT)}, {v(vT)}, 2, {v(vT+1)}")
    k(f"s_and_b32 {s(sT)}, {s(sCG)}, 1")
    k(f"s_lshl_b32 {s(sT)}, {s(sT)}, 2")
    k(f"v_xor_b32 {v(vT)}, {s(sT)}, {v(vT)}")
    k(f"v_lshlrev_b32 {v(vT+2)}, 8, {v(vT+2)}")
    k(f"v_and_b32 {v(vT+1)}, 3, {v(vLane)}")
    k(f"v_lshl_add_u32 {v(vT+2)}, {v(vT+1)}, 3, {v(vT+2)}")
    k(f"s_lshr_b32 {s(sT)}, {s(sCG)}, 1")
    k(f"s_lshl_b32 {s(sT)}, {s(sT)}, 13")
    k(f"s_add_u32 {s(sT)}, {s(sT)}, {WBASE}")
    k(f"v_add_u32 {v(vT+2)}, {s(sT)}, {v(vT+2)}")
    for cb in range(4):
        k(f"v_xor_b32 {v(vT+1)}, {cb}, {v(vT)}")
        k(f"v_lshl_add_u32 {v(vWa+cb)}, {v(vT+1)}, 5, {v(vT+2)}")
    for seg in range(8):
        ad = []
        for l in range(64):
            g, r, c = l // 16, (l % 16) // 4, l % 4
            row = 8 * g + r
            f = r | ((g & 1) << 2)
            ad.append(row * 256 + ((seg ^ f) * 32) + c * 8)
        assert conflicts('b64', ad) == 0


    lblV = k.newlabel("vwave"); lblEp = k.newlabel("after")
    if 'fine' in exp: st_.stamp()
    vm_need([('x', 0, 0), ('x', 0, 1), ('w', 0)])
    if 'fine' in exp: st_.stamp()
    k("s_barrier")
    st_.stamp()
    k(f"s_cmp_ge_u32 {s(sWV)}, 4")
    k(f"s_cbranch_scc1 {lblV}")
    vm_saved = list(vm)

    vLN = 196; vPk = 228; vSt = 244; sTx = 54
    def ln_load():
        srd(k, S_XI, sXp, 0, 2048 * 1152)
        k(f"s_lshl_b32 {s(sT)}, s2, 3")
        k(f"s_add_u32 {s(sT)}, {s(sT)}, {s(sWV)}")
        k(f"s_mul_i32 {s(sT)}, {s(sT)}, 1152")
        k(f"v_lshlrev_b32 {v(vLN+8)}, 4, {v(vLane)}")
        k(f"v_add_u32 {v(vLN+9)}, 1024, {v(vLN+8)}")
        k(f"v_cmp_gt_u32 vcc, 8, {v(vLane)}")
        k(f"v_mov_b32 {v(vLN+10)}, 0x7f000000")
        k(f"v_cndmask_b32 {v(vLN+9)}, {v(vLN+10)}, {v(vLN+9)}, vcc")
        k(f"buffer_load_dwordx4 {v(vLN,4)}, {v(vLN+8)}, {s(S_XI,4)}, {s(sT)} offen")
        k(f"buffer_load_dwordx4 {v(vLN+4,4)}, {v(vLN+9)}, {s(S_XI,4)}, {s(sT)} offen")
        vm.extend([('ln',)] * 2)
    def ln_ops(vFl, vS):
        o = []
        vD = vLN
        def allreduce(r):
            for pm in ("quad_perm:[1,0,3,2]", "quad_perm:[2,3,0,1]", "row_ror:4", "row_ror:8"):
                o.append(f"v_add_f32_dpp {v(r)}, {v(r)}, {v(r)} {pm} row_mask:0xf bank_mask:0xf")
            for sw in ("v_permlane16_swap_b32", "v_permlane32_swap_b32"):
                o.append(f"v_mov_b32 {v(r+1)}, {v(r)}")
                o.append(f"{sw} {v(r)}, {v(r+1)}")
                o.append(f"v_add_f32 {v(r)}, {v(r)}, {v(r+1)}")
        for i in range(8):
            o.append(f"v_lshlrev_b32 {v(vFl+2*i)}, 16, {v(vD+i)}")
            o.append(f"v_and_b32 {v(vFl+2*i+1)}, 0xffff0000, {v(vD+i)}")
        o.append(f"v_add_f32 {v(vS)}, {v(vFl)}, {v(vFl+1)}")
        for i in range(2, 16): o.append(f"v_add_f32 {v(vS)}, {v(vS)}, {v(vFl+i)}")
        allreduce(vS)
        o.append(f"v_mul_f32 {v(vS)}, 0x3ae38e39, {v(vS)}")
        o.append(f"v_cmp_gt_u32 vcc, 8, {v(vLane)}")
        o.append(f"v_cndmask_b32 {v(vS+2)}, 0, {v(vS)}, vcc")
        for i in range(8):
            o.append(f"v_sub_f32 {v(vFl+i)}, {v(vFl+i)}, {v(vS)}")
            o.append(f"v_sub_f32 {v(vFl+8+i)}, {v(vFl+8+i)}, {v(vS+2)}")
        o.append(f"v_mul_f32 {v(vS)}, {v(vFl)}, {v(vFl)}")
        for i in range(1, 16): o.append(f"v_fmac_f32 {v(vS)}, {v(vFl+i)}, {v(vFl+i)}")
        allreduce(vS)
        o.append(f"v_mov_b32 {v(vS+1)}, 0x3727c5ac")
        o.append(f"v_fmac_f32 {v(vS+1)}, 0x3ae38e39, {v(vS)}")
        o.append(f"v_rsq_f32 {v(vS)}, {v(vS+1)}")
        for i in range(16): o.append(f"v_mul_f32 {v(vFl+i)}, {v(vFl+i)}, {v(vS)}")
        for i in range(8): o.append(f"v_cvt_pk_bf16_f32 {v(vD+i)}, {v(vFl+2*i)}, {v(vFl+2*i+1)}")
        o.append(f"v_lshlrev_b32 {v(vS)}, 8, {v(vLane)}")
        o.append(f"v_add_u32 {v(vS+1)}, 16384, {v(vS)}")
        o.append(f"v_mov_b32 {v(vS+2)}, 0x7f000000")
        o.append(f"v_cndmask_b32 {v(vS+1)}, {v(vS+2)}, {v(vS+1)}, vcc")
        o.append(f"s_lshr_b32 {s(sTx)}, s2, 1")
        o.append(f"s_mul_i32 {s(sTx)}, {s(sTx)}, 18432")
        o.append(f"s_and_b32 {s(sT2)}, s2, 1")
        o.append(f"s_lshl_b32 {s(sT2)}, {s(sT2)}, 3")
        o.append(f"s_add_u32 {s(sT2)}, {s(sT2)}, {s(sWV)}")
        o.append(f"s_lshl_b32 {s(sT2)}, {s(sT2)}, 4")
        o.append(f"s_add_u32 {s(sTx)}, {s(sTx)}, {s(sT2)}")
        o.append(f"s_add_u32 {s(S_XI)}, {s(sWS)}, {WS_XNF}")
        o.append(f"s_addc_u32 {s(S_XI+1)}, {s(sWS+1)}, 0")
        o.append(("st", f"buffer_store_dwordx4 {v(vD,4)}, {v(vS)}, {s(S_XI,4)}, {s(sTx)} offen ;nosc"))
        o.append(("st", f"buffer_store_dwordx4 {v(vD+4,4)}, {v(vS+1)}, {s(S_XI,4)}, {s(sTx)} offen ;nosc"))
        return o

    def emit(x):
        if isinstance(x, tuple): k(x[1]); vm.append(('st',))
        else: k(x)
    def wset(t): return [vWf, vWf + 16][t % 2] if t < 14 else 196 + (t - 14) * 16
    def body(isv):
        pend = []
        units = [(t, rb) for t in range(12) for rb in range(8)]
        units += [(t, rb) for P in (0, 1) for t in (12, 13) for rb in (2 * P, 2 * P + 1)]
        units += [(t, rb) for P in (0, 1) for t in (14, 15) for rb in (2 * P, 2 * P + 1)]
        units += [(t, rb) for P in (2, 3) for t in (12, 13, 14, 15) for rb in (2 * P, 2 * P + 1)]
        NU = len(units)
        def issue_x(gi):
            if gi >= NU: return
            t, rb = units[gi]
            j = t // 2
            base = [[vXr0, vXr1], [vXr0, vXr1], [vXr2, vXr3]][j % 3][t % 2]
            o = ((j % 3) * XSL if j % 3 < 2 else 0) + rb * 2048
            k(f"ds_read_b128 {v(vXf+(gi%4)*4,4)}, {v(base)} offset:{o}")
            pend.append(('x', gi))
        def issue_w(t, cb):
            k(f"ds_read_b64_tr_b16 {v(wset(t)+cb*4,2)}, {v(vWa+cb)} offset:{(t%4)*WSL}")
            k(f"ds_read_b64_tr_b16 {v(wset(t)+cb*4+2,2)}, {v(vWa+cb)} offset:{(t%4)*WSL+1024}")
            pend.append(('w0', t, cb)); pend.append(('w', t, cb))
        def need(tag):
            if tag in pend:
                i = pend.index(tag)
                k(f"s_waitcnt lgkmcnt({min(15, len(pend)-1-i)})")
                del pend[:i + 1]
        def epi_setup():
            o = []
            o.append(f"v_and_b32 {v(vT)}, 15, {v(vLane)}")
            o.append(f"v_lshrrev_b32 {v(vT+1)}, 4, {v(vLane)}")
            o.append(f"s_lshl_b32 {s(sOo)}, {s(sH)}, 19")
            o.append(f"s_lshl_b32 {s(sT2)}, {s(sMB)}, 16")
            o.append(f"s_add_u32 {s(sOo)}, {s(sOo)}, {s(sT2)}")
            o.append(f"s_lshl_b32 {s(sT2)}, {s(sRG)}, 15")
            o.append(f"s_add_u32 {s(sOo)}, {s(sOo)}, {s(sT2)}")
            if not isv:
                o.append(f"s_lshl_b32 {s(sT2)}, {s(sCG)}, 3")
                o.append(f"v_add_u32 {v(vT+1)}, {s(sT2)}, {v(vT+1)}")
                o.append(f"v_xor_b32 {v(vT+1)}, {v(vT+1)}, {v(vT)}")
                o.append(f"v_lshlrev_b32 {v(vT)}, 8, {v(vT)}")
            else:
                o.append(f"v_and_b32 {v(vT+2)}, 7, {v(vT)}")
                o.append(f"v_xor_b32 {v(vT+1)}, {v(vT+1)}, {v(vT+2)}")
                o.append(f"v_lshlrev_b32 {v(vT)}, 7, {v(vT)}")
                o.append(f"s_and_b32 {s(sT2)}, {s(sCG)}, 1")
                o.append(f"s_lshl_b32 {s(sT2)}, {s(sT2)}, 13")
                o.append(f"s_add_u32 {s(sOo)}, {s(sOo)}, {s(sT2)}")
                o.append(f"s_add_u32 {s(sOo)}, {s(sOo)}, {WS_VT-WS_K}")
            o.append(f"v_lshl_add_u32 {v(vSt)}, {v(vT+1)}, 4, {v(vT)}")
            o.append(f"v_xor_b32 {v(vSt+1)}, 64, {v(vSt)}")
            return o
        def epi(P):
            o = []; n = 0
            if not isv:
                for rb in (2 * P, 2 * P + 1):
                    for p in range(2):
                        d = vPk + n * 4; n += 1
                        for q in range(2):
                            A0 = vAcc + (rb * 4 + 2 * p + q) * 4
                            o.append(f"v_cvt_pk_bf16_f32 {v(d+2*q)}, {v(A0)}, {v(A0+1)}")
                            o.append(f"v_cvt_pk_bf16_f32 {v(d+2*q+1)}, {v(A0+2)}, {v(A0+3)}")
                        o.append(("st", f"buffer_store_dwordx4 {v(d,4)}, {v(vSt+p)}, {s(S_O,4)}, {s(sOo)} offen"))
                    o.append(f"s_add_u32 {s(sOo)}, {s(sOo)}, 4096")
            else:
                o.append(f"s_add_u32 {s(sT2)}, {s(sOo)}, 4096")
                for cb in range(4):
                    d = vPk + n * 4; n += 1
                    for q in range(2):
                        A0 = vAcc + ((2 * P + q) * 4 + cb) * 4
                        o.append(f"v_cvt_pk_bf16_f32 {v(d+2*q)}, {v(A0)}, {v(A0+1)}")
                        o.append(f"v_cvt_pk_bf16_f32 {v(d+2*q+1)}, {v(A0+2)}, {v(A0+3)}")
                    o.append(("st", f"buffer_store_dwordx4 {v(d,4)}, {v(vSt+P%2)}, {s(S_O,4)}, {s(sOo if cb < 2 else sT2)} offen offset:{(cb%2)*2048}"))
                if P == 1: o.append(f"s_add_u32 {s(sOo)}, {s(sOo)}, 16384")
            return o
        for cb in range(4): issue_w(0, cb)
        for gi in range(3): issue_x(gi)
        SYNC = 3
        side = []
        wq = []
        seen = set()
        for gi, (t, rb) in enumerate(units):
            if gi < 96 and rb == SYNC:
                tags = [('w', t + 1)]
                if (t + 1) % 2 == 0: tags += [('x', (t + 1) // 2, 0), ('x', (t + 1) // 2, 1)]
                if t == 11: tags += [('w', 13)]
                vm_need(tags)
                k("s_barrier")
                if t + 4 < NT: D_w(t + 4)
                if t // 2 + 2 < NT // 2: D_x(t // 2 + 2, t % 2)
                wq += [(t + 1, cb) for cb in range(4)]
                if 'notouch' not in exp and t in ((1,) if 'touchq' in exp else (1, 3, 5, 7, 9)):
                    i_ = (t - 1) // 2
                    if i_ == 0:
                        k(f"s_lshl_b32 {s(94)}, s2, 3")
                        k(f"s_add_u32 {s(94)}, {s(94)}, {s(sWV)}")
                        k(f"s_mul_i32 {s(94)}, {s(94)}, {21*128}")
                        k(f"v_lshlrev_b32 {v(vSt+2)}, 7, {v(vLane)}")
                        k(f"v_cmp_gt_u32 vcc, 21, {v(vLane)}")
                        k(f"v_mov_b32 {v(vSt+3)}, 0x7f000000")
                        k(f"v_cndmask_b32 {v(vSt+2)}, {v(vSt+3)}, {v(vSt+2)}, vcc")
                    p_, sz = ((84, 576 * 8192), (86, 4096 * 1152), (88, 576 * 9216), (90, 576 * 9216), (92, 4608 * 1152))[i_]
                    srd(k, 96, p_, 0, sz)
                    k(f"buffer_load_dword {v(vSt+3)}, {v(vSt+2)}, {s(96,4)}, {s(94)} offen")
                    vm.append(('touch',))
            if gi == 96: wq += [(13, cb) for cb in range(4)]
            if gi == 101:
                vm_need([('w', 14), ('w', 15), ('x', 7, 0), ('x', 7, 1)])
                k("s_barrier")
                wq += [(tt, cb) for tt in (14, 15) for cb in range(4)]
            if gi == 48: vm_need([('ln',)]); side += ln_ops(208, 224)
            if gi == 96: side += epi_setup()
            if gi in (109, 113, 121): side += epi({109: 0, 113: 1, 121: 2}[gi])
            need(('x', gi))
            for cb in range(4):
                if (t, cb) not in seen: need(('w', t, cb)); seen.add((t, cb))
                acc = v(vAcc + (rb * 4 + cb) * 4, 4)
                W_, X_ = v(wset(t) + cb * 4, 4), v(vXf + (gi % 4) * 4, 4)
                C_ = acc if t else 0
                if isv: k(f"v_mfma_f32_16x16x32_bf16 {acc}, {X_}, {W_}, {C_}")
                else:   k(f"v_mfma_f32_16x16x32_bf16 {acc}, {W_}, {X_}, {C_}")
                if gi == 0 and cb == 3: D_w(1)
                if gi == 1 and cb == 3: D_x(1, 0)
                if gi == 2 and cb == 1: D_x(1, 1)
                if gi == 2 and cb == 3: D_w(2); D_w(3)
                if gi == 30 and cb == 3: ln_load()
                if cb == 0: issue_x(gi + 3)
                if wq and (cb == 2 or (gi >= 96 and cb == 3)) and not (gi < 96 and rb == SYNC): issue_w(*wq.pop(0))
                if cb in (1, 3) and side:
                    for _ in range(2 if gi < 96 else 3):
                        if side: emit(side.pop(0))
        st_.stamp()
        while side: emit(side.pop(0))
        for x in epi(3): emit(x)
    body(False)
    k(f"s_branch {lblEp}")
    k.label(lblV)
    vm[:] = vm_saved
    st_.n -= 1 if st_.on else 0
    body(True)
    k.label(lblEp)
    st_.stamp()
    st_.dump(sWS, sWV, 200 * MB, vT)
    k.label(done)
    k("s_endpgm")
    return k, nv, 3 * XSL + 4 * WSL, 0
```

```python
from asmlib import *
from layout import *

def srd(k, base, ptr, off, size):
    if off:
        k(f"s_add_u32 {s(base)}, {s(ptr)}, {off}")
        k(f"s_addc_u32 {s(base+1)}, {s(ptr+1)}, 0")
    else:
        k(f"s_mov_b32 {s(base)}, {s(ptr)}")
        k(f"s_mov_b32 {s(base+1)}, {s(ptr+1)}")
    k(f"s_mov_b32 {s(base+2)}, {size}")
    k(f"s_mov_b32 {s(base+3)}, 0x00020000")

def gen_sg2(name, KD, xoff, woff, res_arg, res_off, out_arg, out_off, extras, NS=4, D=None, exp=''):
    k = Kernel(name)
    NKS = KD // 32
    NST = NKS // 4
    D = NS - 1 if D is None else D
    WREG = 21504
    PITCH = 336
    S_X, S_W, S_R, S_O, S_E = 8, 12, 16, 20, 24
    sWS, sRp, sOp = 28, 30, 32
    sRT, sCT, sWV, sXo, sWo, sM0, sCnt, sT, sOwn = 34, 35, 36, 37, 38, 39, 40, 41, 42
    vLane = 1; vXo = 2; vWo = 6; vWh = 7; vT = 8
    vF = 16
    NV_SL = min(NS, 4)
    vAcc = vF + NV_SL * 36
    nv = vAcc + 80
    nagpr = (NS - NV_SL) * 36
    def fr(slot, off):
        return v(vF + slot * 36 + off, 4) if slot < NV_SL else a((slot - NV_SL) * 36 + off, 4)
    done = k.newlabel("done")
    k(f"s_cmp_ge_u32 s2, 256")
    k(f"s_cbranch_scc1 {done}")
    st_ = Stamps(k, 'stamp' in exp)
    st_.stamp(True); st_.stamp()
    k(f"s_load_dwordx2 {s(sWS,2)}, s[0:1], 96")
    k(f"s_load_dwordx2 {s(sRp,2)}, s[0:1], {res_arg}")
    k(f"s_load_dwordx2 {s(sOp,2)}, s[0:1], {out_arg}")
    k(f"v_lshrrev_b32 {v(vT)}, 6, v0")
    k(f"v_and_b32 {v(vLane)}, 63, v0")
    k(f"v_readfirstlane_b32 {s(sWV)}, {v(vT)}")
    CS_ = 2 if 'map42' in exp else (4 if 'map24' in exp else 1)
    lc = {1: 0, 2: 1, 4: 2}[CS_]
    k(f"s_and_b32 {s(sT)}, s2, 7")
    k(f"s_lshr_b32 {s(sRT)}, {s(sT)}, {lc}")
    k(f"s_lshl_b32 {s(sRT)}, {s(sRT)}, {2+lc}")
    k(f"s_and_b32 {s(sCT)}, {s(sT)}, {CS_-1}")
    k(f"s_lshl_b32 {s(sCT)}, {s(sCT)}, {3-lc}")
    k(f"s_lshr_b32 {s(sT)}, s2, 3")
    k(f"s_and_b32 {s(sOwn)}, {s(sT)}, {4*CS_-1}")
    k(f"s_add_u32 {s(sRT)}, {s(sRT)}, {s(sOwn)}")
    k(f"s_lshr_b32 {s(sT)}, {s(sT)}, {2+lc}")
    k(f"s_add_u32 {s(sCT)}, {s(sCT)}, {s(sT)}")
    k(f"v_lshlrev_b32 {v(vXo)}, 4, {v(vLane)}")
    for b in range(1, 4):
        k(f"v_add_u32 {v(vXo+b)}, {b*NKS*1024}, {v(vXo)}")
    k(f"v_mov_b32 {v(vWo)}, {v(vXo)}")
    k(f"v_lshrrev_b32 {v(vT)}, 4, {v(vLane)}")
    k(f"v_and_b32 {v(vT+1)}, 15, {v(vLane)}")
    k(f"v_lshl_add_u32 {v(vT)}, {v(vT)}, 3, {v(vT+1)}")
    k(f"v_lshlrev_b32 {v(vT)}, 4, {v(vT)}")
    k(f"v_add_u32 {v(vT)}, 4096, {v(vT)}")
    k(f"v_cmp_gt_u32 vcc, 8, {v(vT+1)}")
    k(f"v_mov_b32 {v(vT+2)}, 0x7f000000")
    k(f"v_cndmask_b32 {v(vWh)}, {v(vT+2)}, {v(vT)}, vcc")
    k(f"s_mul_i32 {s(sM0)}, {s(sWV)}, {WREG}")
    k(f"s_waitcnt lgkmcnt(0)")
    srd(k, S_X, sWS, xoff, 128 * NKS * 1024)
    srd(k, S_W, sWS, woff, 8 * NKS * 4608)
    k(f"s_mul_i32 {s(sXo)}, {s(sRT)}, {4*NKS if 'samex' not in exp else 0}")
    k(f"s_add_u32 {s(sXo)}, {s(sXo)}, {s(sWV)}")
    k(f"s_lshl_b32 {s(sXo)}, {s(sXo)}, 10")
    k(f"s_mul_i32 {s(sWo)}, {s(sCT)}, {NKS if 'samew' not in exp else 0}")
    k(f"s_add_u32 {s(sWo)}, {s(sWo)}, {s(sWV)}")
    k(f"s_mul_i32 {s(sWo)}, {s(sWo)}, 4608")

    if 'rot' in exp:
        pass
    def issue(slot):
        for b in range(4):
            k(f"buffer_load_dwordx4 {fr(slot,b*4)}, {v(vXo+b)}, {s(S_X,4)}, {s(sXo)} offen")
        for i in range(4):
            k(f"buffer_load_dwordx4 {fr(slot,16+i*4)}, {v(vWo)}, {s(S_W,4)}, {s(sWo)} offen offset:{1024*i}")
        k(f"buffer_load_dwordx4 {fr(slot,32)}, {v(vWh)}, {s(S_W,4)}, {s(sWo)} offen")
        k(f"s_add_u32 {s(sXo)}, {s(sXo)}, 4096")
        k(f"s_add_u32 {s(sWo)}, {s(sWo)}, {4*4608}")

    for sl in range(D):
        issue(sl)
    srd(k, S_R, sRp, res_off, 2048 * 1152)
    srd(k, S_O, sOp, out_off, 2048 * 1152)
    if extras:
        srd(k, S_E, sWS, WS_HF, WS_STAT - WS_HF + 2048 * 64)
    for i in range(80):
        k(f"v_mov_b32 {v(vAcc+i)}, 0")

    def step(slot, outstanding_after, do_issue):
        if do_issue:
            issue((slot + D) % NS)
            outstanding_after += 1
        k(f"s_waitcnt vmcnt({9*outstanding_after})")
        for cb in range(5):
            for rb in range(4 if 'nomfma' not in exp else 0):
                acc = v(vAcc + (cb * 4 + rb) * 4, 4)
                k(f"v_mfma_f32_16x16x32_bf16 {acc}, {fr(slot,16+cb*4)}, {fr(slot,rb*4)}, {acc}")

    if 'stamp' in exp:
        k(f"s_waitcnt vmcnt({9*(D-1)})"); st_.stamp()
    nloop = NST // NS - 1
    k(f"s_mov_b32 {s(sCnt)}, {nloop}")
    loop = k.newlabel("loop")
    k.label(loop)
    for sl in range(NS):
        step(sl, D - 1, True)
    k(f"s_sub_u32 {s(sCnt)}, {s(sCnt)}, 1")
    k(f"s_cmp_lg_u32 {s(sCnt)}, 0")
    k(f"s_cbranch_scc1 {loop}")
    k.check_loop(loop)
    for sl in range(NS):
        if sl + D < NS:
            step(sl, D - 1, True)
        else:
            step(sl, NS - 1 - sl, False)
    st_.stamp()
    k(f"s_lshl_b32 {s(sCnt)}, {s(sRT)}, 6")
    k(f"s_mul_i32 {s(sCnt)}, {s(sCnt)}, 1152")
    k(f"s_lshl_b32 {s(sOwn)}, {s(sCT)}, 3")
    k(f"s_add_u32 {s(sT)}, {s(sCT)}, 64")
    for r in range(3):
        b = vF + r * 48
        vI, vRow, vC8, vL, vG, vE, vRs, vP = b, b + 1, b + 2, b + 3, b + 4, b + 5, b + 8, b + 12
        k(f"v_add_u32 {v(vI)}, {256*r}, v0")
        k(f"v_mul_u32_u24 {v(vRow)}, 1821, {v(vI)}")
        k(f"v_lshrrev_b32 {v(vRow)}, 14, {v(vRow)}")
        k(f"v_mul_u32_u24 {v(vC8)}, 9, {v(vRow)}")
        k(f"v_sub_u32 {v(vC8)}, {v(vI)}, {v(vC8)}")
        k(f"v_mul_u32_u24 {v(vL)}, {PITCH}, {v(vRow)}")
        k(f"v_lshl_add_u32 {v(vL)}, {v(vC8)}, 5, {v(vL)}")
        k(f"v_cmp_eq_u32 vcc, 8, {v(vC8)}")
        k(f"v_add_u32 {v(vC8)}, {s(sOwn)}, {v(vC8)}")
        k(f"v_mov_b32 {v(vG)}, {s(sT)}")
        k(f"v_cndmask_b32 {v(vC8)}, {v(vC8)}, {v(vG)}, vcc")
        k(f"v_mul_u32_u24 {v(vG)}, 1152, {v(vRow)}")
        k(f"v_lshl_add_u32 {v(vG)}, {v(vC8)}, 4, {v(vG)}")
        if extras:
            k(f"v_lshrrev_b32 {v(vE)}, 4, {v(vRow)}")
            k(f"v_mul_u32_u24 {v(vE)}, 18432, {v(vE)}")
            k(f"v_lshl_add_u32 {v(vE)}, {v(vC8)}, 8, {v(vE)}")
            k(f"v_and_b32 {v(vRs)}, 15, {v(vRow)}")
            k(f"v_lshl_add_u32 {v(vE)}, {v(vRs)}, 4, {v(vE)}")
        if r == 2:
            k(f"v_cmp_gt_u32 vcc, 576, {v(vI)}")
            k(f"v_mov_b32 {v(vRs)}, 0x7f000000")
            k(f"v_cndmask_b32 {v(vG)}, {v(vRs)}, {v(vG)}, vcc")
            k(f"v_cndmask_b32 {v(vL)}, 0, {v(vL)}, vcc")
            if extras:
                k(f"v_cndmask_b32 {v(vE)}, {v(vRs)}, {v(vE)}, vcc")
        k(f"buffer_load_dwordx4 {v(vRs,4)}, {v(vG)}, {s(S_R,4)}, {s(sCnt)} offen")
    k(f"v_and_b32 {v(vT)}, 15, {v(vLane)}")
    k(f"v_mul_u32_u24 {v(vT)}, {PITCH}, {v(vT)}")
    k(f"v_lshrrev_b32 {v(vT+1)}, 4, {v(vLane)}")
    k(f"v_lshl_add_u32 {v(vT)}, {v(vT+1)}, 4, {v(vT)}")
    k(f"v_add_u32 {v(vT)}, {s(sM0)}, {v(vT)}")
    for cb in range(5):
        for rb in range(4):
            k(f"ds_write_b128 {v(vT)}, {v(vAcc+(cb*4+rb)*4,4)} offset:{rb*16*PITCH+cb*64}")
    if extras:
        k(f"s_mul_i32 {s(sT)}, {s(sRT)}, {4*18432}")
    k("s_waitcnt lgkmcnt(0)")
    k("s_barrier")
    for r in range(3):
        b = vF + r * 48
        vL, vP = b + 3, b + 12
        for w in range(4):
            k(f"ds_read_b128 {v(vP+w*8,4)}, {v(vL)} offset:{w*WREG}")
            k(f"ds_read_b128 {v(vP+w*8+4,4)}, {v(vL)} offset:{w*WREG+16}")
    STAT_L = 4 * WREG
    for r in range(3):
        b = vF + r * 48
        vI, vRow, vC8, vL, vG, vE, vRs, vP = b, b + 1, b + 2, b + 3, b + 4, b + 5, b + 8, b + 12
        k(f"s_waitcnt lgkmcnt({min(15,8*(2-r))})" if not extras else f"s_waitcnt lgkmcnt({[15,8,0][r]})")
        for j in range(8):
            k(f"v_add_f32 {v(vP+j)}, {v(vP+j)}, {v(vP+8+j)}")
            k(f"v_add_f32 {v(vP+16+j)}, {v(vP+16+j)}, {v(vP+24+j)}")
        if r == 0:
            k(f"s_waitcnt vmcnt(0)")
        for j in range(8):
            k(f"v_add_f32 {v(vP+j)}, {v(vP+j)}, {v(vP+16+j)}")
        for j in range(4):
            k(f"v_cvt_pk_bf16_f32 {v(vP+8+j)}, {v(vP+2*j)}, {v(vP+2*j+1)}")
        for j in range(4):
            k(f"v_lshlrev_b32 {v(vP+2*j)}, 16, {v(vP+8+j)}")
            k(f"v_and_b32 {v(vP+2*j+1)}, 0xffff0000, {v(vP+8+j)}")
            k(f"v_lshlrev_b32 {v(vP+16+2*j)}, 16, {v(vRs+j)}")
            k(f"v_and_b32 {v(vP+16+2*j+1)}, 0xffff0000, {v(vRs+j)}")
        for j in range(8):
            k(f"v_add_f32 {v(vP+j)}, {v(vP+j)}, {v(vP+16+j)}")
        for j in range(4):
            k(f"v_cvt_pk_bf16_f32 {v(vP+8+j)}, {v(vP+2*j)}, {v(vP+2*j+1)}")
        k(f"buffer_store_dwordx4 {v(vP+8,4)}, {v(vG)}, {s(S_O,4)}, {s(sCnt)} offen")
        if extras:
            k(f"buffer_store_dwordx4 {v(vP+8,4)}, {v(vE)}, {s(S_E,4)}, {s(sT)} offen")
            for j in range(4):
                k(f"v_lshlrev_b32 {v(vP+2*j)}, 16, {v(vP+8+j)}")
                k(f"v_and_b32 {v(vP+2*j+1)}, 0xffff0000, {v(vP+8+j)}")
            k(f"v_add_f32 {v(vP+16)}, {v(vP)}, {v(vP+1)}")
            k(f"v_mul_f32 {v(vP+17)}, {v(vP)}, {v(vP)}")
            k(f"v_fmac_f32 {v(vP+17)}, {v(vP+1)}, {v(vP+1)}")
            for j in range(2, 8):
                k(f"v_add_f32 {v(vP+16)}, {v(vP+16)}, {v(vP+j)}")
                k(f"v_fmac_f32 {v(vP+17)}, {v(vP+j)}, {v(vP+j)}")
            k(f"v_lshlrev_b32 {v(vI)}, 3, {v(vI)}")
            k(f"v_add_u32 {v(vI)}, {STAT_L}, {v(vI)}")
            k(f"ds_write_b64 {v(vI)}, {v(vP+16,2)}")
    st_.stamp()
    st_.dump(sWS, sWV, 200 * MB, vT)
    if extras:
        k("s_waitcnt lgkmcnt(0)")
        k("s_barrier")
        lcs = k.newlabel("cs")
        k(f"s_cmp_eq_u32 {s(sWV)}, 1")
        k(f"s_cbranch_scc1 {lcs}")
        k(f"s_cmp_lg_u32 {s(sWV)}, 0")
        k(f"s_cbranch_scc1 {done}")
        b = vF
        k(f"v_mul_u32_u24 {v(b)}, 72, {v(vLane)}")
        k(f"v_add_u32 {v(b)}, {STAT_L}, {v(b)}")
        for j in range(9):
            k(f"ds_read_b64 {v(b+2+2*j,2)}, {v(b)} offset:{8*j}")
        k(f"s_lshl_b32 {s(sT)}, {s(sRT)}, 12")
        k(f"s_lshl_b32 {s(sOwn)}, {s(sCT)}, 3")
        k(f"s_add_u32 {s(sT)}, {s(sT)}, {s(sOwn)}")
        k(f"s_add_u32 {s(sT)}, {s(sT)}, {WS_STAT-WS_HF}")
        k(f"v_lshlrev_b32 {v(b+1)}, 6, {v(vLane)}")
        k("s_waitcnt lgkmcnt(0)")
        for j in range(1, 9):
            k(f"v_add_f32 {v(b+2)}, {v(b+2)}, {v(b+2+2*j)}")
            k(f"v_add_f32 {v(b+3)}, {v(b+3)}, {v(b+3+2*j)}")
        k(f"buffer_store_dwordx2 {v(b+2,2)}, {v(b+1)}, {s(S_E,4)}, {s(sT)} offen")
        k(f"s_branch {done}")
        k.label(lcs)
        srd(k, S_X, sWS, WS_CSP, 18 * 9216 * 4)
        srd(k, S_W, sWS, WS_CS, 9216 * 4)
        k(f"v_lshlrev_b32 {v(b)}, 2, {v(vLane)}")
        k(f"v_cmp_gt_u32 vcc, 36, {v(vLane)}")
        k(f"v_mov_b32 {v(b+1)}, 0x7f000000")
        k(f"v_cndmask_b32 {v(b)}, {v(b+1)}, {v(b)}, vcc")
        k(f"s_mul_i32 {s(sT)}, s2, 144")
        k(f"s_mov_b32 {s(sOwn)}, {s(sT)}")
        for j in range(18):
            k(f"buffer_load_dword {v(b+2+j)}, {v(b)}, {s(S_X,4)}, {s(sOwn)} offen")
            if j < 17: k(f"s_add_u32 {s(sOwn)}, {s(sOwn)}, {9216*4}")
        k("s_waitcnt vmcnt(0)")
        for j in range(1, 18):
            k(f"v_add_f32 {v(b+2)}, {v(b+2)}, {v(b+2+j)}")
        k(f"buffer_store_dword {v(b+2)}, {v(b)}, {s(S_W,4)}, {s(sT)} offen")
    k.label(done)
    k("s_endpgm")
    nv = max(nv, vF + 3 * 48)
    return k, nv, 4 * WREG + 768 * 8, nagpr
```

```python
from asmlib import *
from layout import *
from k_sg3 import gen_sg3 as gen_sg2
from k_ffnup import gen_ffnup as gen_ffnup1
from k_ffnup2 import gen_ffnup as gen_ffnup2
from k_kv3 import gen_kv
from k_attn4 import gen_attn
from k_repack2 import gen_repack
import sys
opts = dict(a.split("=") for a in sys.argv[2:])
out = sys.argv[1] if len(sys.argv) > 1 else "../cdna_kernels/sequential_preLN__compressed_kv_cla__swiglu_ffn__prompt.s"
ref = open("../cdna_kernels/sequential_preLN__compressed_kv_cla__swiglu_ffn__prompt.s.ref").read().split("\n")
hdr = "\n".join(l for l in ref[:14]) + "\n"
ks = [("k1_kv_kernel", gen_kv("k1_kv_kernel", opts.get("k1", "notouch")), 512),
      ("k2_attn_kernel", gen_attn("k2_attn_kernel", opts.get("k2", "ini2")), 512),
      ("k3_outproj_kernel", gen_sg2("k3_outproj_kernel", 4096, WS_CTX, WS_WOF, 0, 0, 96, WS_H, True, int(opts.get('ns', 4)), int(opts.get('d', 3)), opts.get('k3', '')), 256),
      ("k4_up_kernel", (gen_ffnup2 if "new" in opts.get("k4", "") else gen_ffnup1)("k4_up_kernel", opts.get("k4", "")), 512),
      ("k5_down_kernel", gen_sg2("k5_down_kernel", 4608, WS_ACT, WS_WDF, 96, WS_H, 80, 0, False, int(opts.get('ns5', 4)), int(opts.get('d5', 3)), opts.get('k3', '')), 256)]
if "k0" in opts: ks = [("k0_repack_kernel", gen_repack("k0_repack_kernel"), 512)] + ks
body = '.amdgcn_target "amdgcn-amd-amdhsa--gfx950"\n'
for name, (k, nv, lds, na), blk in ks:
    hdr += f"; @launch kernel={name} grid=(256,1,1) block=({blk},1,1) lds={lds}\n"
    txt = kernel_text(k, nv, agprs=na)
    if name[:2] in opts.get("sc1", "k1_k2_k4").split("_"):
        import re
        txt = re.sub(r"(buffer_store_dwordx4 [^\n;]*)\n", lambda m: m.group(1) + " sc1\n", txt)
    body += txt
    print(name, k.count(), k.nops_inserted, nv, na, lds)
if "st" in opts:
    import re
    body = re.sub(r"(buffer_store_dwordx4 [^\n]*)", lambda m: m.group(1) + " " + opts["st"].replace("_", " "), body)
open(out, "w").write(hdr + body)
```

```python
from asmlib import *
from layout import *
from k_sg2 import srd
from k_repack2 import Repack2, NTASK
import math, struct, re

def f32(x): return "0x%08x" % struct.unpack('<I', struct.pack('<f', x))[0]

def gen_attn(name, exp=''):
    k = Kernel(name)
    THR = 8.0
    QA = 131072
    MF = "v_mfma_f32_16x16x32_bf16"
    ONES = 'adds' not in exp
    RP = 'norp' not in exp
    m_ = re.search(r'sp(\d+)', exp); SPL = int(m_.group(1)) if m_ else (15 if ONES else 25)
    LEAD = 5
    S_WQ, S_XN, S_KV, S_C = 8, 12, 16, 20
    sWS, sQp, sMask, sForce, sTmp2 = 24, 26, 28, 30, 32
    (sH, sP, sWV, sW4, sG, sT, sT2, sK0, sR0, sFirst, sPend, sIt, sNB, sKVb, sLg, sRA, sCo, sWo, sXo, sNBg, sJ, sDk, sDv, sH3) = range(34, 58)
    sDM = 58
    sPtr = 66
    sRS = 74
    sRp, sVw, sTask, sKi, sLst, sQo = 84, 85, 86, 87, 88, 89
    sRet = 90
    if 'qst' in exp: sRp, sVw, sTask, sKi, sLst, sQo = 66, 67, 68, 69, 70, 71; sRet = 72
    vLane, vL16, vD, vMax, vT = 1, 2, 3, 4, 5
    vL, vLB, vM, vAl = 14, 16, 18, 20
    vKa, vVa, vWd, vWd2 = 22, 26, 30, 31
    vQ, vS, vP, vN, vOne, vF, vO = 32, 64, 96, 112, 120, 128, 160
    vLa = vO + 64
    NO = 72 if ONES else 64
    vR = 232
    nv = 240
    st_ = Stamps(k, 'stamp' in exp, base=74 if 'qst' in exp else 92)
    done = k.newlabel("done")
    k(f"s_cmp_ge_u32 s2, 256")
    k(f"s_cbranch_scc1 {done}")
    st_.stamp(True); st_.stamp()
    k(f"s_load_dwordx2 {s(sWS,2)}, s[0:1], 96")
    k(f"s_load_dwordx2 {s(sQp,2)}, s[0:1], 16")
    for i, off in enumerate((40, 72, 56, 64)):
        k(f"s_load_dwordx2 {s(sPtr+2*i,2)}, s[0:1], {off}")
    k(f"v_lshrrev_b32 {v(vT)}, 6, v0")
    k(f"v_and_b32 {v(vLane)}, 63, v0")
    k(f"v_readfirstlane_b32 {s(sWV)}, {v(vT)}")
    k(f"s_and_b32 {s(sH)}, s2, 7")
    k(f"s_lshl_b32 {s(sH)}, {s(sH)}, 2")
    k(f"s_lshr_b32 {s(sT)}, s2, 3")
    k(f"s_and_b32 {s(sT2)}, {s(sT)}, 3")
    k(f"s_add_u32 {s(sH)}, {s(sH)}, {s(sT2)}")
    k(f"s_lshr_b32 {s(sP)}, {s(sT)}, 2")
    k(f"s_and_b32 {s(sW4)}, {s(sWV)}, 3")
    k(f"s_lshr_b32 {s(sG)}, {s(sWV)}, 2")
    k(f"v_lshlrev_b32 {v(vL16)}, 4, {v(vLane)}")
    k(f"s_sub_u32 {s(sRA)}, 15, {s(sP)}")
    k(f"s_lshl_b32 {s(sRA)}, {s(sRA)}, 7")
    k(f"s_lshl_b32 {s(sT)}, {s(sW4)}, 5")
    k(f"s_add_u32 {s(sRA)}, {s(sRA)}, {s(sT)}")
    k(f"s_lshl_b32 {s(sR0)}, {s(sP)}, 7")
    k(f"s_add_u32 {s(sR0)}, {s(sR0)}, {s(sT)}")
    k(f"s_lshl_b32 {s(sNB)}, {s(sP)}, 1")
    k(f"s_add_u32 {s(sNB)}, {s(sNB)}, 2")
    k(f"s_cmp_eq_u32 {s(sG)}, 0")
    k(f"s_cselect_b32 {s(sR0)}, {s(sRA)}, {s(sR0)}")
    k(f"s_cselect_b32 {s(sNBg)}, 99, {s(sNB)}")
    k(f"s_sub_u32 {s(sJ)}, 18, {s(sNB)}")
    k(f"s_lshl_b32 {s(sJ)}, {s(sJ)}, 14")
    k(f"s_lshl_b32 {s(sLg)}, {s(sG)}, 16")
    k(f"v_lshrrev_b32 {v(vT)}, 4, {v(vLane)}")
    k(f"s_and_b32 {s(sT)}, {s(sWV)}, 1")
    k(f"s_lshl_b32 {s(sT)}, {s(sT)}, 2")
    k(f"v_or_b32 {v(vT+1)}, {s(sT)}, {v(vT)}")
    k(f"v_bfe_u32 {v(vT+2)}, {v(vLane)}, 1, 3")
    k(f"v_xor_b32 {v(vT+1)}, {v(vT+1)}, {v(vT+2)}")
    k(f"v_lshlrev_b32 {v(vT)}, 13, {v(vT)}")
    k(f"v_lshl_add_u32 {v(vT)}, {v(vT+1)}, 5, {v(vT)}")
    k(f"v_and_b32 {v(vT+1)}, 1, {v(vLane)}")
    k(f"v_lshl_add_u32 {v(vWd)}, {v(vT+1)}, 4, {v(vT)}")
    k(f"v_add_u32 {v(vWd2)}, {32768-1024}, {v(vWd)}")
    k(f"s_lshl_b32 {s(sWo)}, {s(sWV)}, 16")
    k(f"s_lshl_b32 {s(sT)}, {s(sH)}, 8")
    k(f"s_add_u32 {s(sWo)}, {s(sWo)}, {s(sT)}")
    k(f"s_lshr_b32 {s(sXo)}, {s(sR0)}, 4")
    k(f"s_mul_i32 {s(sXo)}, {s(sXo)}, 18432")
    k(f"v_add_u32 {v(vMax)}, 18432, {v(vL16)}")
    k(f"s_lshl_b32 {s(sKVb)}, {s(sH)}, 19")
    k(f"s_lshl_b32 {s(sT)}, {s(sW4)}, 12")
    k(f"s_add_u32 {s(sKVb)}, {s(sKVb)}, {s(sT)}")
    k(f"s_add_u32 {s(sLg)}, {s(sLg)}, {s(sT)}")
    k(f"s_lshl_b32 {s(sCo)}, {s(sWV)}, 11")
    k(f"s_waitcnt lgkmcnt(0)")
    srd(k, S_WQ, sQp, 0, 576 * 8192)
    srd(k, S_XN, sWS, WS_XNF, 2048 * 1152)

    CH = [16384, 32768, 49152, 81920, 98304, 114688, 131072, 147456, 16384]
    vm = []
    def vm_need(tags):
        idx = max((i for i, x in enumerate(vm) if x in tags), default=-1)
        if idx >= 0:
            k(f"s_waitcnt vmcnt({len(vm)-1-idx})")
            del vm[:idx + 1]
    def dma_wq(c):
        k(f"s_add_u32 m0, {s(sCo)}, {CH[c]}")
        k(f"buffer_load_dwordx4 {v(vWd)}, {s(S_WQ,4)}, {s(sWo)} offen lds")
        k(f"buffer_load_dwordx4 {v(vWd2)}, {s(S_WQ,4)}, {s(sWo)} offen offset:1024 lds")
        k(f"s_add_u32 {s(sWo)}, {s(sWo)}, {64*8192}")
        vm.extend([('wq', c)] * 2)
    def xr(ks, qb): return vQ + ((ks * 2 + qb) % 24) * 4
    def load_xn(c):
        for kk in range(2):
            ks = 2 * c + kk
            k(f"buffer_load_dwordx4 {v(xr(ks,0),4)}, {v(vL16)}, {s(S_XN,4)}, {s(sXo)} offen offset:{kk*1024}")
            k(f"buffer_load_dwordx4 {v(xr(ks,1),4)}, {v(vMax)}, {s(S_XN,4)}, {s(sXo)} offen offset:{kk*1024}")
        k(f"s_add_u32 {s(sXo)}, {s(sXo)}, 2048")
        vm.extend([('xn', c)] * 4)
    def dma_piece(isv, slot, so, j):
        if j == 0: k(f"s_add_u32 m0, {s(sLg)}, {isv*32768 + slot*16384}")
        k(f"buffer_load_dwordx4 {v(vL16)}, {s(S_KV,4)}, {s(so)} offen offset:{1024*j} lds")
    def adv1():
        k(f"s_add_u32 {s(sDv)}, {s(sDk)}, {WS_VT-WS_K}")
        k(f"s_add_u32 {s(sKi)}, {s(sKi)}, 1")
        k(f"s_cmp_eq_u32 {s(sKi)}, {s(sNBg)}")
        k(f"s_cselect_b32 {s(sT2)}, {s(sJ)}, 0x4000")
    def adv2():
        k(f"s_add_u32 {s(sDk)}, {s(sDk)}, {s(sT2)}")
        k(f"s_cmp_gt_u32 {s(sKi)}, 16")
        k(f"s_cselect_b32 {s(sDk)}, 0x70000000, {s(sDk)}")

    m_ = re.search(r'pre(\d)', exp); PRE = int(m_.group(1)) if m_ else 3
    m_ = re.search(r'ini(\d)', exp); INI = int(m_.group(1)) if m_ else 1
    for c in range(INI): dma_wq(c); load_xn(c)
    srd(k, S_KV, sWS, WS_K, 32 * MB)
    srd(k, S_C, sWS, WS_CTX, 16 * MB)
    k(f"v_lshrrev_b32 {v(vT)}, 4, {v(vLane)}")
    k(f"v_bfe_u32 {v(vT+1)}, {v(vLane)}, 2, 2")
    k(f"v_lshl_add_u32 {v(vT+2)}, {v(vT)}, 3, {v(vT+1)}")
    k(f"v_and_b32 {v(vT)}, 1, {v(vT)}")
    k(f"v_lshl_or_b32 {v(vT)}, {v(vT)}, 2, {v(vT+1)}")
    k(f"v_lshlrev_b32 {v(vT+2)}, 8, {v(vT+2)}")
    k(f"v_and_b32 {v(vT+1)}, 3, {v(vLane)}")
    k(f"v_lshl_add_u32 {v(vT+2)}, {v(vT+1)}, 3, {v(vT+2)}")
    k(f"v_add_u32 {v(vT+2)}, {CH[0]}, {v(vT+2)}")
    for db in range(8):
        k(f"v_xor_b32 {v(vT+1)}, {db}, {v(vT)}")
        k(f"v_lshl_add_u32 {v(vKa+db)}, {v(vT+1)}, 5, {v(vT+2)}")
    vA = vR
    k(f"v_and_b32 {v(vT)}, 15, {v(vLane)}")
    k(f"v_lshrrev_b32 {v(vT+1)}, 4, {v(vLane)}")
    k(f"s_lshl_b32 {s(sT)}, {s(sG)}, 16")
    k(f"v_add_u32 {v(vA)}, {s(sT)}, {v(vL16)}")
    k(f"v_lshlrev_b32 {v(vT+1)}, 2, {v(vT+1)}")
    k(f"v_sub_u32 {v(vD)}, {v(vT)}, {v(vT+1)}")
    for j in range(4):
        k(f"v_cmp_gt_i32 {s(sDM+2*j,2)}, {j}, {v(vD)}")
    for r in (vL, vL + 1, vM, vM + 1): k(f"v_mov_b32 {v(r)}, 0")
    k(f"s_lshl_b32 {s(sLst)}, {s(sWV)}, 12"); k(f"s_add_u32 {s(sLst)}, {s(sLst)}, {QA}")
    k(f"s_lshl_b32 {s(sQo)}, s2, 15"); k(f"s_lshl_b32 {s(sT)}, {s(sW4)}, 13"); k(f"s_add_u32 {s(sQo)}, {s(sQo)}, {s(sT)}"); k(f"s_add_u32 {s(sQo)}, {s(sQo)}, {WS_QA}")
    k(f"s_mov_b32 {s(sFirst)}, 1"); k(f"s_mov_b32 {s(sPend)}, 0"); k(f"s_mov_b32 {s(sK0)}, 0"); k(f"s_mov_b32 {s(sH3)}, 0")
    k(f"s_mov_b64 {s(sForce,2)}, -1")
    k(f"s_mov_b32 {s(sIt)}, 0"); k(f"s_mov_b32 {s(sKi)}, 0"); k(f"s_mov_b32 {s(sDk)}, {s(sKVb)}")
    k(f"s_lshr_b32 {s(sRp)}, s2, 3"); k(f"s_mul_i32 {s(sT)}, {s(sRp)}, 205"); k(f"s_lshr_b32 {s(sT)}, {s(sT)}, 11"); k(f"s_mul_i32 {s(sT)}, {s(sT)}, 10")
    assert all((x * 205) >> 11 == x // 10 for x in range(33))
    k(f"s_mov_b32 {s(sRS+1)}, -1")
    k(f"s_sub_u32 {s(sRp)}, {s(sRp)}, {s(sT)}"); k(f"s_add_u32 {s(sRp)}, {s(sRp)}, 1")
    k(f"s_mov_b32 {s(sVw)}, 0")
    k(f"s_lshl_b32 {s(sTask)}, s2, 3"); k(f"s_add_u32 {s(sTask)}, {s(sTask)}, {s(sWV)}")
    pend = []
    def need(tag):
        if tag in pend:
            i = pend.index(tag)
            k(f"s_waitcnt lgkmcnt({min(15, len(pend)-1-i)})")
            del pend[:i + 1]
    def rd_wq(gi):
        kk, db = divmod(gi % 16, 8)
        b = vF + (gi % 8) * 4
        k(f"ds_read_b64_tr_b16 {v(b,2)}, {v(vKa+db)} offset:{kk*8192}")
        k(f"ds_read_b64_tr_b16 {v(b+2,2)}, {v(vKa+db)} offset:{kk*8192+1024}")
        pend.append(('w0', gi)); pend.append(('w', gi))
    vm_need([('wq', 0), ('xn', 0)])
    k("s_barrier")
    if 'qst' in exp: st_.stamp()
    for gi in range(LEAD): rd_wq(gi)
    for c in range(9):
        if 'qst' in exp and c in (1, 2, 4, 6): st_.stamp()
        for gi in range(16 * c, 16 * c + 16):
            kk, db = divmod(gi % 16, 8)
            ks = 2 * c + kk
            if gi % 16 == 15 - LEAD and c < 8:
                vm_need([('wq', c + 1), ('xn', c + 1)])
                k("s_barrier")
            need(('w', gi))
            for qb in range(2):
                acc = v(vO + (db * 2 + qb) * 4, 4)
                k(f"{MF} {acc}, {v(vF+(gi%8)*4,4)}, {v(xr(ks,qb),4)}, {acc if ks else 0}")
            if gi + LEAD < 144: rd_wq(gi + LEAD)
            g5 = (gi + LEAD) % 16
            if g5 >= 8 and (gi + LEAD) // 16 < 8:
                cc = (gi + LEAD) // 16
                k(f"v_add_u32 {v(vKa+g5-8)}, {(CH[cc+1]-CH[cc]) & 0xffffffff}, {v(vKa+g5-8)}")
            if gi < 10 and gi % 2 == 0 and INI + gi // 2 < PRE: dma_wq(INI + gi // 2)
            if gi < 10 and gi % 2 == 1 and INI + gi // 2 < PRE: load_xn(INI + gi // 2)
            if gi % 16 == 11 and c + PRE < 9: dma_wq(c + PRE)
            if gi % 16 == 13 and c + PRE < 9: load_xn(c + PRE)
            if c == 6 and gi % 16 in (4, 6, 8, 12):
                dma_piece(0, 0, sDk, [4, 6, 8, 12].index(gi % 16)); vm.append(('k0',))
    adv1(); adv2()
    k(f"s_mov_b32 {s(sT)}, {f32(math.log2(math.e) / math.sqrt(128.0))}")
    k("s_waitcnt vmcnt(0)")
    k("s_barrier")
    def rd(step_par, itpar, f, do_qk, do_pv):
        hb = 0 if step_par else 1
        b = vF + (f % 8) * 4
        if f < 8:
            if not do_qk: return
            ds, kb = divmod(f, 2)
            k(f"ds_read_b128 {v(b,4)}, {v(vA)} offset:{itpar*16384 + hb*8192 + kb*4096 + ds*1024}")
        else:
            if not do_pv: return
            k(f"ds_read_b128 {v(b,4)}, {v(vA)} offset:{32768 + (1-itpar)*16384 + (f-8)*2048 + hb*1024}")
    for f in range(8): rd(1, 0, f, True, False)
    n = 0
    for ds in range(4):
        for qb in range(2):
            for hh in range(2):
                o = vO + ((2 * ds + hh) * 2 + qb) * 4
                for j in range(4): k(f"v_mul_f32 {v(o+j)}, {s(sT)}, {v(o+j)}")
                k(f"v_cvt_pk_bf16_f32 {v(vQ+(ds*2+qb)*4+2*hh)}, {v(o)}, {v(o+1)}")
                k(f"v_cvt_pk_bf16_f32 {v(vQ+(ds*2+qb)*4+2*hh+1)}, {v(o+2)}, {v(o+3)}")
            dma_piece(n // 4, 1 - n // 4, sDk if n < 4 else sDv, n % 4); n += 1
    for i in range(8): k(f"v_mov_b32 {v(vN+i)}, 0")
    srd(k, S_XN, sWS, 0, WS_SIZE)
    rp = Repack2(k, sPtr, sRS, S_WQ, S_XN, sLst, vLane, vT + 1, vS + 16, vOne, 124)
    st_.stamp()

    ool = []
    LS = [k.newlabel("SLOW0"), k.newlabel("SLOW1"), k.newlabel("SLOWP"), k.newlabel("RPK")]
    def xreduce(r, tmp, op):
        for sw_ in ("v_permlane16_swap_b32", "v_permlane32_swap_b32"):
            k(f"v_mov_b32 {v(tmp)}, {v(r)}")
            k(f"{sw_} {v(r)}, {v(tmp)}")
            k(f"{op} {v(r)}, {v(r)}, {v(tmp)}")
    def vmwait():
        la, lr = k.newlabel("vwalt"), k.newlabel("vwret")
        k(f"s_cmp_lg_u32 {s(sVw)}, 0")
        k(f"s_cbranch_scc1 {la}")
        k("s_waitcnt vmcnt(0)")
        k.label(lr)
        def f():
            k.label(la)
            l2 = k.newlabel("vw8")
            k(f"s_cmp_eq_u32 {s(sVw)}, 8")
            k(f"s_mov_b32 {s(sVw)}, 0")
            k(f"s_cbranch_scc1 {l2}")
            k("s_waitcnt vmcnt(4)")
            k(f"s_branch {lr}")
            k.label(l2)
            k("s_waitcnt vmcnt(8)")
            k(f"s_branch {lr}")
        ool.append(f)

    def step(step_par, itpar, do_qk, do_sm, do_pv, sync, nxt, dma_carry=False, grp=1, extra_b=()):
        sw = vS + (0 if step_par else 16)
        sr = vS + (16 if step_par else 0)
        pw = vP + (8 if step_par else 0)
        pr = vP + (0 if step_par else 8)
        valu = []
        if do_sm:
            prev = []
            for qb in range(2):
                for kb in range(2):
                    for hh in range(2):
                        r0 = sr + (kb * 2 + qb) * 4 + 2 * hh
                        valu.append(f"v_exp_f32 {v(r0)}, {v(r0)}")
                        valu.append(f"v_exp_f32 {v(r0+1)}, {v(r0+1)}")
                        valu.extend(prev)
                        prev = [f"v_cvt_pk_bf16_f32 {v(pw+qb*4+kb*2+hh)}, {v(r0)}, {v(r0+1)}"]
                        if not ONES:
                            prev = [f"v_add_f32 {v(vL+qb)}, {v(vL+qb)}, {v(r0)}"] + prev + [f"v_add_f32 {v(vL+qb)}, {v(vL+qb)}, {v(r0+1)}"]
            valu.extend(prev)
        mx = []
        if do_qk:
            mx = [f"v_max3_f32 {v(vMax)}, {v(sw)}, {v(sw+1)}, {v(sw+2)}",
                  f"v_max3_f32 {v(vT)}, {v(sw+3)}, {v(sw+4)}, {v(sw+5)}",
                  f"v_max3_f32 {v(vMax)}, {v(vMax)}, {v(sw+6)}, {v(sw+7)}",
                  f"v_max3_f32 {v(vT)}, {v(vT)}, {v(sw+8)}, {v(sw+9)}",
                  f"v_max3_f32 {v(vMax)}, {v(vMax)}, {v(sw+10)}, {v(sw+11)}",
                  f"v_max3_f32 {v(vT)}, {v(vT)}, {v(sw+12)}, {v(sw+13)}",
                  f"v_max3_f32 {v(vMax)}, {v(vMax)}, {v(sw+14)}, {v(sw+15)}",
                  f"v_max_f32 {v(vMax)}, {v(vMax)}, {v(vT)}",
                  f"v_cmp_lt_f32 vcc, {f32(THR)}, {v(vMax)}"]
        G0 = (grp == 0)
        def ph(n):
            if 'ph' in exp and do_pv and do_qk and itpar == 0 and step_par == (1 if 'phodd' in exp else 0): k(f"s_memtime {s(66+2*n,2)}")
        qa, qc = [], []
        if dma_carry:
            if G0:
                qa = [(lambda j=j: dma_piece(0, 1 - itpar, sDk, j)) for j in range(4)]
                qc = [(lambda j=j: dma_piece(1, itpar, sDv, j)) for j in range(4)]
            else:
                qa = [(lambda j=j: dma_piece(1, itpar, sDv, j)) for j in range(4)]
        if sync:
            qa = [adv1, adv2]
            if not G0: qc = [(lambda j=j: dma_piece(0, itpar, sDk, j)) for j in range(4)]
        def maskpre():
            k(f"s_cmp_eq_u32 {s(sK0)}, {s(sR0)}")
            k(f"s_cselect_b64 {s(sMask,2)}, -1, {s(sForce,2)}")
        def maskpre2():
            if step_par == 0:
                k(f"s_add_u32 {s(sIt)}, {s(sIt)}, 1")
                if not G0:
                    k(f"s_cmp_eq_u32 {s(sIt)}, {s(sNBg)}")
                    k(f"s_cselect_b64 {s(sMask,2)}, -1, {s(sMask,2)}")
            k(f"s_add_u32 {s(sK0)}, {s(sK0)}, 32")
        if do_qk: qc = qc + [maskpre, maskpre2]
        ph(0)
        if do_qk: k("s_waitcnt lgkmcnt(0)")
        ph(1)
        for sl in range(8):
            ds, kb = divmod(sl, 2)
            if do_qk:
                for qb in range(2):
                    D_ = v(sw + (kb * 2 + qb) * 4, 4)
                    C = v(vN + qb * 4, 4) if ds == 0 else D_
                    k(f"{MF} {D_}, {v(vF+sl*4,4)}, {v(vQ+(ds*2+qb)*4,4)}, {C}")
                if sl == 0: k("s_setprio 2")
                if sl == 7: k("s_setprio 0")
            rd(step_par, itpar, 8 + sl, do_qk, do_pv)
            if qa and sl % 2 == 1: qa.pop(0)()
        while qa: qa.pop(0)()
        ph(2)
        m_ = re.search(r'b1at(\d+)', exp); B1 = int(m_.group(1)) if m_ else SPL - 1
        m_ = re.search(r'b0at(\d+)', exp); B0 = int(m_.group(1)) if m_ else 15
        for i_, x in enumerate(valu[:SPL]):
            k(x)
            if sync and not G0 and i_ == B1:
                vmwait()
                k("s_waitcnt lgkmcnt(0)")
                k("s_barrier")
        for x in extra_b: k(x)
        ph(3)
        if do_pv and not (sync and not G0):
            k("s_waitcnt lgkmcnt(0)")
        ph(4)
        if do_pv and ONES:
            for qb in range(2):
                acc = v(vLa + qb * 4, 4)
                k(f"{MF} {acc}, {v(vOne,4)}, {v(pr+qb*4,4)}, {acc}")
            k("s_setprio 2")
        for sl in range(8, 16):
            if do_pv:
                for qb in range(2):
                    acc = v(vO + ((sl - 8) * 2 + qb) * 4, 4)
                    k(f"{MF} {acc}, {v(vF+(sl-8)*4,4)}, {v(pr+qb*4,4)}, {acc}")
                if sl == 8 and not ONES: k("s_setprio 2")
                if sl == 15: k("s_setprio 0")
            if sync and G0 and sl == B0:
                vmwait()
                k("s_barrier")
                for f in range(sl - 8): rd(nxt[0], nxt[1], f, nxt[2], nxt[3])
            if nxt and not (sync and G0 and sl < B0): rd(nxt[0], nxt[1], sl - 8, nxt[2], nxt[3])
            if qc: qc.pop(0)()
        while qc: qc.pop(0)()
        ph(5)
        ph(6)
        for x in valu[SPL:] + mx: k(x)
        ph(7)
        if 'noend' in exp: return
        ls, lsr = k.newlabel("slow"), k.newlabel("slowret")
        if do_qk:
            k(f"s_or_b64 {s(sTmp2,2)}, vcc, {s(sMask,2)}")
        else:
            k(f"s_or_b64 {s(sTmp2,2)}, {s(sForce,2)}, {s(sForce,2)}")
        k(f"s_cbranch_scc1 {ls}")
        k.label(lsr)
        tgt = (LS[step_par] if do_qk else LS[2])
        def stub(ls=ls, lsr=lsr, tgt=tgt):
            k.label(ls)
            k(f"s_call_b64 {s(sRet,2)}, {tgt}")
            k(f"s_branch {lsr}")
        ool.append(stub)
        if step_par == 1 and dma_carry and RP:
            l1, l1r = k.newlabel("rps"), k.newlabel("rpret")
            k(f"s_cmp_eq_u32 {s(sIt)}, {s(sRp)}")
            k(f"s_cbranch_scc1 {l1}")
            k.label(l1r)
            def stub2(l1=l1, l1r=l1r):
                k.label(l1)
                k(f"s_call_b64 {s(sRet,2)}, {LS[3]}")
                k(f"s_branch {l1r}")
            ool.append(stub2)

    def slow_routine(step_par, do_qk, do_sm, do_pv):
        sw = vS + (0 if step_par else 16)
        k.label(LS[step_par] if do_qk else LS[2])
        k("s_nop 7")
        k(f"s_mov_b64 {s(sForce,2)}, 0")
        l1 = k.newlabel("np")
        k(f"s_cmp_eq_u32 {s(sPend)}, 0")
        k(f"s_cbranch_scc1 {l1}")
        for i in range(NO): k(f"v_mul_f32 {v(vO+i)}, {v(vO+i)}, {v(vAl+(i//4)%2)}")
        k(f"s_mov_b32 {s(sPend)}, 0")
        k.label(l1)
        if step_par == 1 and do_sm:
            l2 = k.newlabel("nh2")
            k(f"s_cmp_lg_u32 {s(sIt)}, {s(sNBg)}")
            k(f"s_cbranch_scc1 {l2}")
            if not ONES:
                for qb in range(2):
                    k(f"v_mov_b32 {v(vLB+qb)}, {v(vL+qb)}")
                    k(f"v_mov_b32 {v(vL+qb)}, 0")
            k(f"s_mov_b32 {s(sH3)}, 1")
            k(f"s_mov_b64 {s(sForce,2)}, -1")
            k.label(l2)
        if step_par == 0 and do_pv:
            l3 = k.newlabel("nh3")
            k(f"s_cmp_eq_u32 {s(sH3)}, 0")
            k(f"s_cbranch_scc1 {l3}")
            k(f"s_mov_b32 {s(sH3)}, 0")
            for qb in range(2):
                if ONES: k(f"v_rcp_f32 {v(vLB+qb)}, {v(vLa+qb*4)}")
                else:
                    xreduce(vLB + qb, vT + 1, "v_add_f32")
                    k(f"v_rcp_f32 {v(vLB+qb)}, {v(vLB+qb)}")
            k(f"s_lshl_b32 {s(sT)}, {s(sP)}, 7")
            k(f"s_lshl_b32 {s(sCo)}, {s(sW4)}, 5")
            k(f"s_add_u32 {s(sT)}, {s(sT)}, {s(sCo)}")
            store_ctx(sT, range(4), vLB)
            for i in range(NO): k(f"v_mov_b32 {v(vO+i)}, 0")
            k.label(l3)
        if do_qk:
            l4, l4b, l5 = k.newlabel("nm"), k.newlabel("allm"), k.newlabel("nr")
            k(f"s_sub_u32 {s(sT)}, {s(sK0)}, 32")
            k(f"s_cmp_lt_u32 {s(sT)}, {s(sR0)}")
            k(f"s_cbranch_scc1 {l4}")
            k(f"v_mov_b32 {v(vT+2)}, 0xff800000")
            k(f"s_cmp_gt_u32 {s(sT)}, {s(sR0)}")
            k(f"s_cbranch_scc1 {l4b}")
            for j in range(4):
                k(f"v_cndmask_b32 {v(sw+j)}, {v(sw+j)}, {v(vT+2)}, {s(sDM+2*j,2)}")
                k(f"v_cndmask_b32 {v(sw+12+j)}, {v(sw+12+j)}, {v(vT+2)}, {s(sDM+2*j,2)}")
                k(f"v_mov_b32 {v(sw+8+j)}, {v(vT+2)}")
            k(f"s_branch {l4}")
            k.label(l4b)
            for j in range(16): k(f"v_mov_b32 {v(sw+j)}, {v(vT+2)}")
            k.label(l4)
            for qb in range(2):
                a0, a1 = sw + qb * 4, sw + (2 + qb) * 4
                k(f"v_max3_f32 {v(vT+3+qb)}, {v(a0)}, {v(a0+1)}, {v(a0+2)}")
                k(f"v_max3_f32 {v(vT+3+qb)}, {v(vT+3+qb)}, {v(a0+3)}, {v(a1)}")
                k(f"v_max3_f32 {v(vT+3+qb)}, {v(vT+3+qb)}, {v(a1+1)}, {v(a1+2)}")
                k(f"v_max_f32 {v(vT+3+qb)}, {v(vT+3+qb)}, {v(a1+3)}")
            k(f"v_max_f32 {v(vMax)}, {v(vT+3)}, {v(vT+4)}")
            k(f"v_cmp_lt_f32 vcc, {f32(THR)}, {v(vMax)}")
            lf, lj, lr = k.newlabel("first"), k.newlabel("join"), k.newlabel("resc")
            k(f"s_cmp_lg_u32 {s(sFirst)}, 0")
            k(f"s_cbranch_scc1 {lr}")
            k(f"s_cbranch_vccz {l5}")
            k.label(lr)
            for qb in range(2): xreduce(vT + 3 + qb, vT + 1, "v_max_f32")
            k(f"s_cmp_lg_u32 {s(sFirst)}, 0")
            k(f"s_cbranch_scc1 {lf}")
            for qb in range(2):
                k(f"v_max_f32 {v(vT+3+qb)}, 0, {v(vT+3+qb)}")
                k(f"v_sub_f32 {v(vAl+qb)}, 0, {v(vT+3+qb)}")
                k(f"v_exp_f32 {v(vAl+qb)}, {v(vAl+qb)}")
                if not ONES: k(f"v_mul_f32 {v(vL+qb)}, {v(vL+qb)}, {v(vAl+qb)}")
            k(f"s_mov_b32 {s(sPend)}, 1")
            k(f"s_mov_b64 {s(sForce,2)}, -1")
            k(f"s_branch {lj}")
            k.label(lf)
            k(f"s_mov_b32 {s(sFirst)}, 0")
            for qb in range(2):
                k(f"v_cmp_eq_f32 vcc, 0xff800000, {v(vT+3+qb)}")
                k(f"v_cndmask_b32 {v(vT+3+qb)}, {v(vT+3+qb)}, 0, vcc")
            k.label(lj)
            for qb in range(2):
                k(f"v_add_f32 {v(vM+qb)}, {v(vM+qb)}, {v(vT+3+qb)}")
                for kb in range(2):
                    for j in range(4):
                        r = sw + (kb * 2 + qb) * 4 + j
                        k(f"v_sub_f32 {v(r)}, {v(r)}, {v(vT+3+qb)}")
                for j in range(4): k(f"v_sub_f32 {v(vN+qb*4+j)}, 0, {v(vM+qb)}")
            k.label(l5)
            l7 = k.newlabel("ninf")
            k(f"s_cmp_le_u32 {s(sK0)}, {s(sR0)}")
            k(f"s_cbranch_scc1 {l7}")
            for r in range(8): k(f"v_mov_b32 {v(vN+r)}, 0xff800000")
            k.label(l7)
        if step_par == 0 and do_qk:
            l6 = k.newlabel("nh1")
            k(f"s_cmp_lg_u32 {s(sIt)}, {s(sNBg)}")
            k(f"s_cbranch_scc1 {l6}")
            k(f"s_add_u32 {s(sT)}, {s(sQo)}, 4096")
            for i in range(8):
                k(f"buffer_load_dwordx4 {v(vQ+4*i,4)}, {v(vL16)}, {s(S_XN,4)}, {s(sQo if i < 4 else sT)} offen offset:{1024*(i%4)} sc1")
            for r in range(8): k(f"v_mov_b32 {v(vN+r)}, 0")
            k(f"v_mov_b32 {v(vM)}, 0"); k(f"v_mov_b32 {v(vM+1)}, 0")
            k(f"s_mov_b32 {s(sFirst)}, 1")
            k(f"s_mov_b64 {s(sForce,2)}, -1")
            k(f"s_mov_b32 {s(sR0)}, {s(sRA)}")
            k(f"s_movk_i32 {s(sK0)}, {17*64}")
            k("s_waitcnt vmcnt(0)")
            k.label(l6)
        k("s_nop 1")
        k(f"s_setpc_b64 {s(sRet,2)}")

    def rp_routine():
        k.label(LS[3])
        l9, lsk = k.newlabel("rp1"), k.newlabel("rpskip")
        k(f"s_add_u32 {s(sRp)}, {s(sRp)}, 2")
        k(f"s_cmp_eq_u32 {s(sRS+1)}, -1")
        k(f"s_cbranch_scc1 {l9}")
        rp.phase2()
        k(f"s_mov_b32 {s(sVw)}, 4")
        k.label(l9)
        k(f"s_cmp_ge_u32 {s(sTask)}, {NTASK}")
        k(f"s_cbranch_scc1 {lsk}")
        rp.phase1(sTask)
        k(f"s_add_u32 {s(sTask)}, {s(sTask)}, 2048")
        k(f"s_add_u32 {s(sVw)}, {s(sVw)}, 4")
        k("s_nop 1")
        k(f"s_setpc_b64 {s(sRet,2)}")
        k.label(lsk)
        k(f"s_mov_b32 {s(sRp)}, 99")
        k("s_nop 1")
        k(f"s_setpc_b64 {s(sRet,2)}")

    def store_ctx(row_sgpr, dss, vscale):
        k(f"s_lshl_b32 {s(sCo)}, {s(row_sgpr)}, 13")
        k(f"s_lshl_b32 {s(sXo)}, {s(sH)}, 12")
        k(f"s_add_u32 {s(sCo)}, {s(sCo)}, {s(sXo)}")
        k(f"s_add_u32 {s(sXo)}, {s(sCo)}, {128*1024}")
        for ds in dss:
            for qb in range(2):
                o0, o1 = vO + ((2 * ds) * 2 + qb) * 4, vO + ((2 * ds + 1) * 2 + qb) * 4
                for j in range(4):
                    k(f"v_mul_f32 {v(o0+j)}, {v(o0+j)}, {v(vscale+qb)}")
                    k(f"v_mul_f32 {v(o1+j)}, {v(o1+j)}, {v(vscale+qb)}")
                k(f"v_cvt_pk_bf16_f32 {v(o0)}, {v(o0)}, {v(o0+1)}")
                k(f"v_cvt_pk_bf16_f32 {v(o0+1)}, {v(o0+2)}, {v(o0+3)}")
                k(f"v_cvt_pk_bf16_f32 {v(o0+2)}, {v(o1)}, {v(o1+1)}")
                k(f"v_cvt_pk_bf16_f32 {v(o0+3)}, {v(o1+2)}, {v(o1+3)}")
                k(f"buffer_store_dwordx4 {v(o0,4)}, {v(vL16)}, {s(S_C,4)}, {s(sCo if qb == 0 else sXo)} offen offset:{ds*1024}")

    lgrp1, ljoin = k.newlabel("grp1"), k.newlabel("grpjoin")
    k(f"s_cmp_lg_u32 {s(sG)}, 0")
    k(f"s_cbranch_scc1 {lgrp1}")
    zero = [f"v_mov_b32 {v(vO+i)}, 0" for i in range(NO)] + [f"v_mov_b32 {v(vOne+i)}, 0x3f803f80" for i in range(4)]
    for grp in (0, 1):
        if grp == 1: k.label(lgrp1)
        else:
            k(f"s_add_u32 {s(sT)}, {s(sQo)}, 4096")
            for i in range(8):
                k(f"buffer_store_dwordx4 {v(vQ+4*i,4)}, {v(vL16)}, {s(S_XN,4)}, {s(sQo if i < 4 else sT)} offen offset:{1024*(i%4)}")
        step(1, 0, True, False, False, False, (0, 0, True, False), grp=grp, extra_b=zero)
        step(0, 0, True, True, False, True, (1, 1, True, True), grp=grp)
        loop = k.newlabel("loop")
        k.label(loop)
        for itpar in (1, 0):
            step(1, itpar, True, True, True, False, (0, itpar, True, True), dma_carry=True, grp=grp)
            step(0, itpar, True, True, True, True, (1, 1 - itpar, True, True), grp=grp)
        k(f"s_cmp_lt_u32 {s(sIt)}, 17")
        k(f"s_cbranch_scc1 {loop}")
        k.check_loop(loop)
        k("s_waitcnt lgkmcnt(0)")
        step(1, 1, False, True, True, False, (0, 1, False, True), grp=grp)
        step(0, 1, False, False, True, False, None, grp=grp)
        if grp == 0: k(f"s_branch {ljoin}")
    k.label(ljoin)
    k("s_nop 7")
    k("s_waitcnt vmcnt(0)")
    k("s_barrier")
    for qb in range(2):
        if ONES: k(f"v_mov_b32 {v(vL+qb)}, {v(vLa+qb*4)}")
        else: xreduce(vL + qb, vT + 1, "v_add_f32")
        k(f"v_cmp_eq_f32 vcc, 0, {v(vL+qb)}")
        k(f"v_mov_b32 {v(vT+1)}, {f32(-1e30)}")
        k(f"v_cndmask_b32 {v(vLB+qb)}, {v(vM+qb)}, {v(vT+1)}, vcc")
    k(f"s_mul_i32 {s(sT)}, {s(sWV)}, 9216")
    k(f"v_add_u32 {v(vT)}, {s(sT)}, {v(vL16)}")
    k(f"s_xor_b32 {s(sT2)}, {s(sWV)}, 4")
    k(f"s_mul_i32 {s(sT2)}, {s(sT2)}, 9216")
    k(f"v_add_u32 {v(vT+1)}, {s(sT2)}, {v(vL16)}")
    k(f"ds_write_b128 {v(vT)}, {v(vL,4)} offset:8192")
    lg1, lgj = k.newlabel("mg1"), k.newlabel("mgj")
    k(f"s_cmp_lg_u32 {s(sG)}, 0")
    k(f"s_cbranch_scc1 {lg1}")
    def merge(own, other):
        for i in range(8):
            k(f"ds_write_b128 {v(vT)}, {v(vO+other*32+4*i,4)} offset:{1024*i}")
        k("s_waitcnt lgkmcnt(0)")
        k("s_barrier")
        X = vP
        k(f"ds_read_b128 {v(X,4)}, {v(vT+1)} offset:8192")
        for i in range(8):
            k(f"ds_read_b128 {v(vS+4*i,4)}, {v(vT+1)} offset:{1024*i}")
        k("s_waitcnt lgkmcnt(8)")
        for qb in range(2):
            k(f"v_max_f32 {v(vM+qb)}, {v(vLB+qb)}, {v(X+2+qb)}")
            k(f"v_sub_f32 {v(vLB+qb)}, {v(vLB+qb)}, {v(vM+qb)}")
            k(f"v_sub_f32 {v(X+2+qb)}, {v(X+2+qb)}, {v(vM+qb)}")
            k(f"v_exp_f32 {v(vLB+qb)}, {v(vLB+qb)}")
            k(f"v_exp_f32 {v(X+2+qb)}, {v(X+2+qb)}")
            k(f"v_mul_f32 {v(vL+qb)}, {v(vL+qb)}, {v(vLB+qb)}")
            k(f"v_fmac_f32 {v(vL+qb)}, {v(X+qb)}, {v(X+2+qb)}")
            k(f"v_rcp_f32 {v(vL+qb)}, {v(vL+qb)}")
        k("s_waitcnt lgkmcnt(0)")
        for i in range(32):
            qb = (i // 4) % 2
            k(f"v_mul_f32 {v(vO+own*32+i)}, {v(vO+own*32+i)}, {v(vLB+qb)}")
            k(f"v_fmac_f32 {v(vO+own*32+i)}, {v(vS+i)}, {v(X+2+qb)}")
        store_ctx(sRA, (2 * own, 2 * own + 1), vL)
    merge(0, 1)
    k(f"s_branch {lgj}")
    k.label(lg1)
    merge(1, 0)
    k.label(lgj)
    st_.dump(sWS, sWV, 200 * MB, vT, srd_base=60, extra=list(range(66, 82, 2)) if 'ph' in exp else ())
    k.label(done)
    k("s_endpgm")
    i = 0
    while i < len(ool):
        ool[i](); i += 1
    if 'noend' not in exp:
        slow_routine(0, True, True, True); slow_routine(1, True, True, True); slow_routine(1, False, False, False)
        if RP: rp_routine()
    return k, nv, 163840, 0
```

```python
from asmlib import *
from layout import *
from k_sg2 import srd

def gen_kv(name, exp=''):
    k = Kernel(name)
    NT = 16
    XSL, WSL = 32768, 16384
    WBASE = 3 * XSL
    S_X, S_WK, S_WV, S_O, S_W, S_XI = 8, 12, 16, 20, 24, 28
    sWS, sCp, sKp, sVp, sXp = 32, 34, 36, 38, 40
    sMB, sH, sWV, sRG, sCG, sT, sT2, sXo, sWo, sLx, sLw, sOo = range(42, 54)
    vLane, vXd, vXd2, vWd, vWd2, vXr0, vXr1, vT = 1, 2, 3, 4, 5, 6, 7, 8
    vWa = 16
    vWf = 20
    vXf = 52
    vAcc = 68
    nv = 248
    st_ = Stamps(k, 'stamp' in exp)
    done = k.newlabel("done")
    k(f"s_cmp_ge_u32 s2, 256")
    k(f"s_cbranch_scc1 {done}")
    st_.stamp(True); st_.stamp()
    k(f"s_load_dwordx2 {s(sWS,2)}, s[0:1], 96")
    k(f"s_load_dwordx2 {s(sCp,2)}, s[0:1], 8")
    k(f"s_load_dwordx2 {s(sKp,2)}, s[0:1], 24")
    k(f"s_load_dwordx2 {s(sVp,2)}, s[0:1], 32")
    k(f"s_load_dwordx2 {s(sXp,2)}, s[0:1], 0")
    k(f"s_load_dwordx2 {s(84,2)}, s[0:1], 16")
    k(f"s_load_dwordx2 {s(86,2)}, s[0:1], 40")
    k(f"s_load_dwordx4 {s(88,4)}, s[0:1], 56")
    k(f"s_load_dwordx2 {s(92,2)}, s[0:1], 72")
    k(f"v_lshrrev_b32 {v(vT)}, 6, v0")
    k(f"v_and_b32 {v(vLane)}, 63, v0")
    k(f"v_readfirstlane_b32 {s(sWV)}, {v(vT)}")
    k(f"s_and_b32 {s(sMB)}, s2, 1")
    k(f"s_lshl_b32 {s(sMB)}, {s(sMB)}, 2")
    k(f"s_lshr_b32 {s(sT)}, s2, 3")
    k(f"s_and_b32 {s(sT2)}, {s(sT)}, 3")
    k(f"s_add_u32 {s(sMB)}, {s(sMB)}, {s(sT2)}")
    k(f"s_bfe_u32 {s(sH)}, s2, 0x20001")
    k(f"s_lshl_b32 {s(sH)}, {s(sH)}, 3")
    k(f"s_lshr_b32 {s(sT)}, {s(sT)}, 2")
    k(f"s_add_u32 {s(sH)}, {s(sH)}, {s(sT)}")
    k(f"s_and_b32 {s(sRG)}, {s(sWV)}, 1")
    k(f"s_lshr_b32 {s(sCG)}, {s(sWV)}, 1")
    k(f"v_lshrrev_b32 {v(vT)}, 3, {v(vLane)}")
    k(f"v_and_b32 {v(vT+1)}, 7, {v(vLane)}")
    k(f"v_xor_b32 {v(vT+1)}, {v(vT+1)}, {v(vT)}")
    k(f"v_lshlrev_b32 {v(vT)}, 10, {v(vT)}")
    k(f"v_lshl_add_u32 {v(vXd)}, {v(vT+1)}, 4, {v(vT)}")
    k(f"v_add_u32 {v(vXd2)}, {8192-1024}, {v(vXd)}")
    k(f"s_lshl_b32 {s(sXo)}, {s(sMB)}, 18")
    k(f"s_lshl_b32 {s(sT)}, {s(sWV)}, 14")
    k(f"s_add_u32 {s(sXo)}, {s(sXo)}, {s(sT)}")
    k(f"s_lshl_b32 {s(sLx)}, {s(sWV)}, 11")
    k(f"v_lshrrev_b32 {v(vT)}, 4, {v(vLane)}")
    k(f"s_and_b32 {s(sT)}, {s(sWV)}, 1")
    k(f"s_lshl_b32 {s(sT)}, {s(sT)}, 2")
    k(f"v_or_b32 {v(vT+1)}, {s(sT)}, {v(vT)}")
    k(f"v_bfe_u32 {v(vT+2)}, {v(vLane)}, 1, 3")
    k(f"v_xor_b32 {v(vT+1)}, {v(vT+1)}, {v(vT+2)}")
    k(f"v_lshlrev_b32 {v(vT)}, 13, {v(vT)}")
    k(f"v_lshl_add_u32 {v(vT)}, {v(vT+1)}, 5, {v(vT)}")
    k(f"v_and_b32 {v(vT+1)}, 1, {v(vLane)}")
    k(f"v_lshl_add_u32 {v(vWd)}, {v(vT+1)}, 4, {v(vT)}")
    k(f"v_add_u32 {v(vWd2)}, {32768-1024}, {v(vWd)}")
    k(f"s_and_b32 {s(sWo)}, {s(sWV)}, 3")
    k(f"s_lshl_b32 {s(sWo)}, {s(sWo)}, 16")
    k(f"s_lshl_b32 {s(sT)}, {s(sH)}, 8")
    k(f"s_add_u32 {s(sWo)}, {s(sWo)}, {s(sT)}")
    k(f"s_add_u32 {s(sLw)}, {s(sLx)}, {WBASE}")
    k(f"s_waitcnt lgkmcnt(0)")
    if 'fine' in exp: st_.stamp()
    srd(k, S_X, sCp, 0, 2048 * 1024)
    k(f"s_cmp_ge_u32 {s(sWV)}, 4")
    k(f"s_cselect_b32 {s(S_W)}, {s(sVp)}, {s(sKp)}")
    k(f"s_cselect_b32 {s(S_W+1)}, {s(sVp+1)}, {s(sKp+1)}")
    k(f"s_mov_b32 {s(S_W+2)}, {512*8192}")
    k(f"s_mov_b32 {s(S_W+3)}, 0x00020000")

    def dma_w(t):
        k(f"s_add_u32 m0, {s(sLw)}, {(t%4)*WSL}")
        k(f"buffer_load_dwordx4 {v(vWd)}, {s(S_W,4)}, {s(sWo)} offen lds")
        k(f"buffer_load_dwordx4 {v(vWd2)}, {s(S_W,4)}, {s(sWo)} offen offset:1024 lds")
        k(f"s_add_u32 {s(sWo)}, {s(sWo)}, {32*8192}")
    def dma_x(j, half):
        k(f"s_add_u32 m0, {s(sLx)}, {(j%3)*XSL + half*16384}")
        k(f"s_add_u32 {s(sT)}, {s(sXo)}, {half*128*1024 + j*128}")
        k(f"buffer_load_dwordx4 {v(vXd)}, {s(S_X,4)}, {s(sT)} offen lds")
        k(f"buffer_load_dwordx4 {v(vXd2)}, {s(S_X,4)}, {s(sT)} offen offset:1024 lds")
    vm = []
    def D_w(t): dma_w(t); vm.extend([('w', t)] * 2)
    def D_x(j, h): dma_x(j, h); vm.extend([('x', j, h)] * 2)
    def vm_need(tags):
        idx = max((i for i, x in enumerate(vm) if x in tags), default=-1)
        if idx >= 0:
            k(f"s_waitcnt vmcnt({len(vm)-1-idx})")
            del vm[:idx + 1]
    D_x(0, 0); D_x(0, 1); D_w(0)

    srd(k, S_O, sWS, WS_K, 32 * MB)
    k(f"v_and_b32 {v(vT)}, 15, {v(vLane)}")
    k(f"v_lshrrev_b32 {v(vT+1)}, 4, {v(vLane)}")
    k(f"v_and_b32 {v(vT+2)}, 7, {v(vLane)}")
    k(f"v_xor_b32 {v(vT+1)}, {v(vT+1)}, {v(vT+2)}")
    k(f"v_lshlrev_b32 {v(vT)}, 7, {v(vT)}")
    k(f"v_lshl_add_u32 {v(vXr0)}, {v(vT+1)}, 4, {v(vT)}")
    k(f"s_lshl_b32 {s(sT)}, {s(sRG)}, 14")
    k(f"v_add_u32 {v(vXr0)}, {s(sT)}, {v(vXr0)}")
    k(f"v_xor_b32 {v(vXr1)}, 64, {v(vXr0)}")
    for isv in (0, 1):
        for tt in (0, 1):
            ad = []
            for l in range(64):
                m, g = l % 16, l // 16
                row = m
                ad.append(row * 128 + (((4 * tt + g) ^ (row & 7)) * 16))
            assert conflicts('b128', ad) == 0
    vXr2, vXr3 = vT + 6, vT + 7
    k(f"v_add_u32 {v(vXr2)}, {2*XSL}, {v(vXr0)}")
    k(f"v_add_u32 {v(vXr3)}, {2*XSL}, {v(vXr1)}")
    k(f"v_lshrrev_b32 {v(vT)}, 4, {v(vLane)}")
    k(f"v_bfe_u32 {v(vT+1)}, {v(vLane)}, 2, 2")
    k(f"v_lshl_add_u32 {v(vT+2)}, {v(vT)}, 3, {v(vT+1)}")
    k(f"v_and_b32 {v(vT)}, 1, {v(vT)}")
    k(f"v_lshl_or_b32 {v(vT)}, {v(vT)}, 2, {v(vT+1)}")
    k(f"s_and_b32 {s(sT)}, {s(sCG)}, 1")
    k(f"s_lshl_b32 {s(sT)}, {s(sT)}, 2")
    k(f"v_xor_b32 {v(vT)}, {s(sT)}, {v(vT)}")
    k(f"v_lshlrev_b32 {v(vT+2)}, 8, {v(vT+2)}")
    k(f"v_and_b32 {v(vT+1)}, 3, {v(vLane)}")
    k(f"v_lshl_add_u32 {v(vT+2)}, {v(vT+1)}, 3, {v(vT+2)}")
    k(f"s_lshr_b32 {s(sT)}, {s(sCG)}, 1")
    k(f"s_lshl_b32 {s(sT)}, {s(sT)}, 13")
    k(f"s_add_u32 {s(sT)}, {s(sT)}, {WBASE}")
    k(f"v_add_u32 {v(vT+2)}, {s(sT)}, {v(vT+2)}")
    for cb in range(4):
        k(f"v_xor_b32 {v(vT+1)}, {cb}, {v(vT)}")
        k(f"v_lshl_add_u32 {v(vWa+cb)}, {v(vT+1)}, 5, {v(vT+2)}")
    for seg in range(8):
        ad = []
        for l in range(64):
            g, r, c = l // 16, (l % 16) // 4, l % 4
            row = 8 * g + r
            f = r | ((g & 1) << 2)
            ad.append(row * 256 + ((seg ^ f) * 32) + c * 8)
        assert conflicts('b64', ad) == 0


    lblV = k.newlabel("vwave"); lblEp = k.newlabel("after")
    if 'fine' in exp: st_.stamp()
    vm_need([('x', 0, 0), ('x', 0, 1), ('w', 0)])
    if 'fine' in exp: st_.stamp()
    k("s_barrier")
    st_.stamp()
    k(f"s_cmp_ge_u32 {s(sWV)}, 4")
    k(f"s_cbranch_scc1 {lblV}")
    vm_saved = list(vm)

    vLN = 196; vPk = 228; vSt = 244; sTx = 54
    def ln_load():
        srd(k, S_XI, sXp, 0, 2048 * 1152)
        k(f"s_lshl_b32 {s(sT)}, s2, 3")
        k(f"s_add_u32 {s(sT)}, {s(sT)}, {s(sWV)}")
        k(f"s_mul_i32 {s(sT)}, {s(sT)}, 1152")
        k(f"v_lshlrev_b32 {v(vLN+8)}, 4, {v(vLane)}")
        k(f"v_add_u32 {v(vLN+9)}, 1024, {v(vLN+8)}")
        k(f"v_cmp_gt_u32 vcc, 8, {v(vLane)}")
        k(f"v_mov_b32 {v(vLN+10)}, 0x7f000000")
        k(f"v_cndmask_b32 {v(vLN+9)}, {v(vLN+10)}, {v(vLN+9)}, vcc")
        k(f"buffer_load_dwordx4 {v(vLN,4)}, {v(vLN+8)}, {s(S_XI,4)}, {s(sT)} offen")
        k(f"buffer_load_dwordx4 {v(vLN+4,4)}, {v(vLN+9)}, {s(S_XI,4)}, {s(sT)} offen")
        vm.extend([('ln',)] * 2)
    def ln_ops(vFl, vS):
        o = []
        vD = vLN
        def allreduce(r):
            for pm in ("quad_perm:[1,0,3,2]", "quad_perm:[2,3,0,1]", "row_ror:4", "row_ror:8"):
                o.append(f"v_add_f32_dpp {v(r)}, {v(r)}, {v(r)} {pm} row_mask:0xf bank_mask:0xf")
            for sw in ("v_permlane16_swap_b32", "v_permlane32_swap_b32"):
                o.append(f"v_mov_b32 {v(r+1)}, {v(r)}")
                o.append(f"{sw} {v(r)}, {v(r+1)}")
                o.append(f"v_add_f32 {v(r)}, {v(r)}, {v(r+1)}")
        for i in range(8):
            o.append(f"v_lshlrev_b32 {v(vFl+2*i)}, 16, {v(vD+i)}")
            o.append(f"v_and_b32 {v(vFl+2*i+1)}, 0xffff0000, {v(vD+i)}")
        o.append(f"v_add_f32 {v(vS)}, {v(vFl)}, {v(vFl+1)}")
        for i in range(2, 16): o.append(f"v_add_f32 {v(vS)}, {v(vS)}, {v(vFl+i)}")
        allreduce(vS)
        o.append(f"v_mul_f32 {v(vS)}, 0x3ae38e39, {v(vS)}")
        o.append(f"v_cmp_gt_u32 vcc, 8, {v(vLane)}")
        o.append(f"v_cndmask_b32 {v(vS+2)}, 0, {v(vS)}, vcc")
        for i in range(8):
            o.append(f"v_sub_f32 {v(vFl+i)}, {v(vFl+i)}, {v(vS)}")
            o.append(f"v_sub_f32 {v(vFl+8+i)}, {v(vFl+8+i)}, {v(vS+2)}")
        o.append(f"v_mul_f32 {v(vS)}, {v(vFl)}, {v(vFl)}")
        for i in range(1, 16): o.append(f"v_fmac_f32 {v(vS)}, {v(vFl+i)}, {v(vFl+i)}")
        allreduce(vS)
        o.append(f"v_mov_b32 {v(vS+1)}, 0x3727c5ac")
        o.append(f"v_fmac_f32 {v(vS+1)}, 0x3ae38e39, {v(vS)}")
        o.append(f"v_rsq_f32 {v(vS)}, {v(vS+1)}")
        for i in range(16): o.append(f"v_mul_f32 {v(vFl+i)}, {v(vFl+i)}, {v(vS)}")
        for i in range(8): o.append(f"v_cvt_pk_bf16_f32 {v(vD+i)}, {v(vFl+2*i)}, {v(vFl+2*i+1)}")
        o.append(f"v_lshlrev_b32 {v(vS)}, 8, {v(vLane)}")
        o.append(f"v_add_u32 {v(vS+1)}, 16384, {v(vS)}")
        o.append(f"v_mov_b32 {v(vS+2)}, 0x7f000000")
        o.append(f"v_cndmask_b32 {v(vS+1)}, {v(vS+2)}, {v(vS+1)}, vcc")
        o.append(f"s_lshr_b32 {s(sTx)}, s2, 1")
        o.append(f"s_mul_i32 {s(sTx)}, {s(sTx)}, 18432")
        o.append(f"s_and_b32 {s(sT2)}, s2, 1")
        o.append(f"s_lshl_b32 {s(sT2)}, {s(sT2)}, 3")
        o.append(f"s_add_u32 {s(sT2)}, {s(sT2)}, {s(sWV)}")
        o.append(f"s_lshl_b32 {s(sT2)}, {s(sT2)}, 4")
        o.append(f"s_add_u32 {s(sTx)}, {s(sTx)}, {s(sT2)}")
        o.append(f"s_add_u32 {s(S_XI)}, {s(sWS)}, {WS_XNF}")
        o.append(f"s_addc_u32 {s(S_XI+1)}, {s(sWS+1)}, 0")
        o.append(("st", f"buffer_store_dwordx4 {v(vD,4)}, {v(vS)}, {s(S_XI,4)}, {s(sTx)} offen ;nosc"))
        o.append(("st", f"buffer_store_dwordx4 {v(vD+4,4)}, {v(vS+1)}, {s(S_XI,4)}, {s(sTx)} offen ;nosc"))
        return o

    def emit(x):
        if isinstance(x, tuple): k(x[1]); vm.append(('st',))
        else: k(x)
    def wset(t): return [vWf, vWf + 16][t % 2] if t < 14 else 196 + (t - 14) * 16
    def body(isv):
        pend = []
        units = [(t, rb) for t in range(12) for rb in range(8)]
        units += [(t, rb) for P in (0, 1) for t in (12, 13) for rb in (2 * P, 2 * P + 1)]
        units += [(t, rb) for P in (0, 1) for t in (14, 15) for rb in (2 * P, 2 * P + 1)]
        units += [(t, rb) for P in (2, 3) for t in (12, 13, 14, 15) for rb in (2 * P, 2 * P + 1)]
        NU = len(units)
        def issue_x(gi):
            if gi >= NU: return
            t, rb = units[gi]
            j = t // 2
            base = [[vXr0, vXr1], [vXr0, vXr1], [vXr2, vXr3]][j % 3][t % 2]
            o = ((j % 3) * XSL if j % 3 < 2 else 0) + rb * 2048
            k(f"ds_read_b128 {v(vXf+(gi%4)*4,4)}, {v(base)} offset:{o}")
            pend.append(('x', gi))
        def issue_w(t, cb):
            k(f"ds_read_b64_tr_b16 {v(wset(t)+cb*4,2)}, {v(vWa+cb)} offset:{(t%4)*WSL}")
            k(f"ds_read_b64_tr_b16 {v(wset(t)+cb*4+2,2)}, {v(vWa+cb)} offset:{(t%4)*WSL+1024}")
            pend.append(('w0', t, cb)); pend.append(('w', t, cb))
        def need(tag):
            if tag in pend:
                i = pend.index(tag)
                k(f"s_waitcnt lgkmcnt({min(15, len(pend)-1-i)})")
                del pend[:i + 1]
        def epi_setup():
            o = []
            o.append(f"v_lshlrev_b32 {v(vSt)}, 4, {v(vLane)}")
            o.append(f"s_lshl_b32 {s(sOo)}, {s(sH)}, 19")
            o.append(f"s_lshl_b32 {s(sT2)}, {s(sMB)}, 16")
            o.append(f"s_add_u32 {s(sOo)}, {s(sOo)}, {s(sT2)}")
            o.append(f"s_lshl_b32 {s(sT2)}, {s(sRG)}, 15")
            o.append(f"s_add_u32 {s(sOo)}, {s(sOo)}, {s(sT2)}")
            o.append(f"s_and_b32 {s(sT2)}, {s(sCG)}, 1")
            o.append(f"s_lshl_b32 {s(sT2)}, {s(sT2)}, {13 if isv else 11}")
            o.append(f"s_add_u32 {s(sOo)}, {s(sOo)}, {s(sT2)}")
            if isv: o.append(f"s_add_u32 {s(sOo)}, {s(sOo)}, {WS_VT-WS_K}")
            return o
        def epi(P):
            o = []; n = 0
            if not isv:
                for rb in (2 * P, 2 * P + 1):
                    for p in range(2):
                        d = vPk + n * 4; n += 1
                        for q in range(2):
                            A0 = vAcc + (rb * 4 + 2 * p + q) * 4
                            o.append(f"v_cvt_pk_bf16_f32 {v(d+2*q)}, {v(A0)}, {v(A0+1)}")
                            o.append(f"v_cvt_pk_bf16_f32 {v(d+2*q+1)}, {v(A0+2)}, {v(A0+3)}")
                        o.append(("st", f"buffer_store_dwordx4 {v(d,4)}, {v(vSt)}, {s(S_O,4)}, {s(sOo)} offen offset:{p*1024}"))
                    o.append(f"s_add_u32 {s(sOo)}, {s(sOo)}, 4096")
            else:
                o.append(f"s_add_u32 {s(sT2)}, {s(sOo)}, 4096")
                for cb in range(4):
                    d = vPk + n * 4; n += 1
                    for q in range(2):
                        A0 = vAcc + ((2 * P + q) * 4 + cb) * 4
                        o.append(f"v_cvt_pk_bf16_f32 {v(d+2*q)}, {v(A0)}, {v(A0+1)}")
                        o.append(f"v_cvt_pk_bf16_f32 {v(d+2*q+1)}, {v(A0+2)}, {v(A0+3)}")
                    o.append(("st", f"buffer_store_dwordx4 {v(d,4)}, {v(vSt)}, {s(S_O,4)}, {s(sOo if cb < 2 else sT2)} offen offset:{(cb%2)*2048+(P%2)*1024}"))
                if P == 1: o.append(f"s_add_u32 {s(sOo)}, {s(sOo)}, 16384")
            return o
        for cb in range(4): issue_w(0, cb)
        for gi in range(3): issue_x(gi)
        SYNC = 3
        side = []
        wq = []
        seen = set()
        for gi, (t, rb) in enumerate(units):
            if gi < 96 and rb == SYNC:
                tags = [('w', t + 1)]
                if (t + 1) % 2 == 0: tags += [('x', (t + 1) // 2, 0), ('x', (t + 1) // 2, 1)]
                if t == 11: tags += [('w', 13)]
                vm_need(tags)
                k("s_barrier")
                if t + 4 < NT: D_w(t + 4)
                if t // 2 + 2 < NT // 2: D_x(t // 2 + 2, t % 2)
                wq += [(t + 1, cb) for cb in range(4)]
                if 'notouch' not in exp and t in ((1,) if 'touchq' in exp else (1, 3, 5, 7, 9)):
                    i_ = (t - 1) // 2
                    if i_ == 0:
                        k(f"s_lshl_b32 {s(94)}, s2, 3")
                        k(f"s_add_u32 {s(94)}, {s(94)}, {s(sWV)}")
                        k(f"s_mul_i32 {s(94)}, {s(94)}, {21*128}")
                        k(f"v_lshlrev_b32 {v(vSt+2)}, 7, {v(vLane)}")
                        k(f"v_cmp_gt_u32 vcc, 21, {v(vLane)}")
                        k(f"v_mov_b32 {v(vSt+3)}, 0x7f000000")
                        k(f"v_cndmask_b32 {v(vSt+2)}, {v(vSt+3)}, {v(vSt+2)}, vcc")
                    p_, sz = ((84, 576 * 8192), (86, 4096 * 1152), (88, 576 * 9216), (90, 576 * 9216), (92, 4608 * 1152))[i_]
                    srd(k, 96, p_, 0, sz)
                    k(f"buffer_load_dword {v(vSt+3)}, {v(vSt+2)}, {s(96,4)}, {s(94)} offen")
                    vm.append(('touch',))
            if gi == 96: wq += [(13, cb) for cb in range(4)]
            if gi == 101:
                vm_need([('w', 14), ('w', 15), ('x', 7, 0), ('x', 7, 1)])
                k("s_barrier")
                wq += [(tt, cb) for tt in (14, 15) for cb in range(4)]
            if gi == 48: vm_need([('ln',)]); side += ln_ops(208, 224)
            if gi == 96: side += epi_setup()
            if gi in (109, 113, 121): side += epi({109: 0, 113: 1, 121: 2}[gi])
            need(('x', gi))
            for cb in range(4):
                if (t, cb) not in seen: need(('w', t, cb)); seen.add((t, cb))
                acc = v(vAcc + (rb * 4 + cb) * 4, 4)
                W_, X_ = v(wset(t) + cb * 4, 4), v(vXf + (gi % 4) * 4, 4)
                C_ = acc if t else 0
                if isv: k(f"v_mfma_f32_16x16x32_bf16 {acc}, {X_}, {W_}, {C_}")
                else:   k(f"v_mfma_f32_16x16x32_bf16 {acc}, {W_}, {X_}, {C_}")
                if gi == 0 and cb == 3: D_w(1)
                if gi == 1 and cb == 3: D_x(1, 0)
                if gi == 2 and cb == 1: D_x(1, 1)
                if gi == 2 and cb == 3: D_w(2); D_w(3)
                if gi == 30 and cb == 3: ln_load()
                if cb == 0: issue_x(gi + 3)
                if wq and (cb == 2 or (gi >= 96 and cb == 3)) and not (gi < 96 and rb == SYNC): issue_w(*wq.pop(0))
                if cb in (1, 3) and side:
                    for _ in range(2 if gi < 96 else 3):
                        if side: emit(side.pop(0))
        st_.stamp()
        while side: emit(side.pop(0))
        for x in epi(3): emit(x)
    body(False)
    k(f"s_branch {lblEp}")
    k.label(lblV)
    vm[:] = vm_saved
    st_.n -= 1 if st_.on else 0
    body(True)
    k.label(lblEp)
    st_.stamp()
    st_.dump(sWS, sWV, 200 * MB, vT)
    k.label(done)
    k("s_endpgm")
    return k, nv, 3 * XSL + 4 * WSL, 0
```

```python
from asmlib import *
from layout import *

def srd(k, base, ptr, off, size):
    if off:
        k(f"s_add_u32 {s(base)}, {s(ptr)}, {off}")
        k(f"s_addc_u32 {s(base+1)}, {s(ptr+1)}, 0")
    else:
        k(f"s_mov_b32 {s(base)}, {s(ptr)}")
        k(f"s_mov_b32 {s(base+1)}, {s(ptr+1)}")
    k(f"s_mov_b32 {s(base+2)}, {size}")
    k(f"s_mov_b32 {s(base+3)}, 0x00020000")

def gen_sg3(name, KD, xoff, woff, res_arg, res_off, out_arg, out_off, extras, NS=4, D=None, exp=''):
    k = Kernel(name)
    NKS = KD // 32
    NST = NKS // 4
    D = NS - 1 if D is None else D
    WREG = 21504
    PITCH = 336
    S_X, S_W, S_R, S_O, S_E = 8, 12, 16, 20, 24
    sWS, sRp, sOp = 28, 30, 32
    sRT, sCT, sWV, sXo, sWo, sM0, sCnt, sT, sOwn = 34, 35, 36, 37, 38, 39, 40, 41, 42
    vLane = 1; vXo = 2; vWo = 6; vWh = 7; vT = 8
    vF = 16
    NV_SL = min(NS, 4)
    vAcc = vF + NV_SL * 36
    nv = vAcc + 80
    nagpr = (NS - NV_SL) * 36
    def fr(slot, off):
        return v(vF + slot * 36 + off, 4) if slot < NV_SL else a((slot - NV_SL) * 36 + off, 4)
    done = k.newlabel("done")
    k(f"s_cmp_ge_u32 s2, 256")
    k(f"s_cbranch_scc1 {done}")
    st_ = Stamps(k, 'stamp' in exp)
    st_.stamp(True); st_.stamp()
    k(f"s_load_dwordx2 {s(sWS,2)}, s[0:1], 96")
    k(f"s_load_dwordx2 {s(sRp,2)}, s[0:1], {res_arg}")
    k(f"s_load_dwordx2 {s(sOp,2)}, s[0:1], {out_arg}")
    k(f"v_lshrrev_b32 {v(vT)}, 6, v0")
    k(f"v_and_b32 {v(vLane)}, 63, v0")
    k(f"v_readfirstlane_b32 {s(sWV)}, {v(vT)}")
    CS_ = 2 if 'map42' in exp else (4 if 'map24' in exp else 1)
    lc = {1: 0, 2: 1, 4: 2}[CS_]
    k(f"s_and_b32 {s(sT)}, s2, 7")
    k(f"s_lshr_b32 {s(sRT)}, {s(sT)}, {lc}")
    k(f"s_lshl_b32 {s(sRT)}, {s(sRT)}, {2+lc}")
    k(f"s_and_b32 {s(sCT)}, {s(sT)}, {CS_-1}")
    k(f"s_lshl_b32 {s(sCT)}, {s(sCT)}, {3-lc}")
    k(f"s_lshr_b32 {s(sT)}, s2, 3")
    k(f"s_and_b32 {s(sOwn)}, {s(sT)}, {4*CS_-1}")
    k(f"s_add_u32 {s(sRT)}, {s(sRT)}, {s(sOwn)}")
    k(f"s_lshr_b32 {s(sT)}, {s(sT)}, {2+lc}")
    k(f"s_add_u32 {s(sCT)}, {s(sCT)}, {s(sT)}")
    k(f"v_lshlrev_b32 {v(vXo)}, 4, {v(vLane)}")
    for b in range(1, 4):
        k(f"v_add_u32 {v(vXo+b)}, {b*NKS*1024}, {v(vXo)}")
    k(f"v_mov_b32 {v(vWo)}, {v(vXo)}")
    k(f"v_lshrrev_b32 {v(vT)}, 4, {v(vLane)}")
    k(f"v_and_b32 {v(vT+1)}, 15, {v(vLane)}")
    k(f"v_lshl_add_u32 {v(vT)}, {v(vT)}, 3, {v(vT+1)}")
    k(f"v_lshlrev_b32 {v(vT)}, 4, {v(vT)}")
    k(f"v_add_u32 {v(vT)}, 4096, {v(vT)}")
    k(f"v_cmp_gt_u32 vcc, 8, {v(vT+1)}")
    k(f"v_mov_b32 {v(vT+2)}, 0x7f000000")
    k(f"v_cndmask_b32 {v(vWh)}, {v(vT+2)}, {v(vT)}, vcc")
    k(f"s_mul_i32 {s(sM0)}, {s(sWV)}, {WREG}")
    k(f"s_waitcnt lgkmcnt(0)")
    srd(k, S_X, sWS, xoff, 128 * NKS * 1024)
    srd(k, S_W, sWS, woff, 8 * NKS * 4608)
    k(f"s_mul_i32 {s(sXo)}, {s(sRT)}, {4*NKS if 'samex' not in exp else 0}")
    k(f"s_add_u32 {s(sXo)}, {s(sXo)}, {s(sWV)}")
    k(f"s_lshl_b32 {s(sXo)}, {s(sXo)}, 10")
    k(f"s_mul_i32 {s(sWo)}, {s(sCT)}, {NKS if 'samew' not in exp else 0}")
    k(f"s_add_u32 {s(sWo)}, {s(sWo)}, {s(sWV)}")
    k(f"s_mul_i32 {s(sWo)}, {s(sWo)}, 4608")

    if 'rot' in exp:
        pass
    def issue(slot):
        for b in range(4):
            k(f"buffer_load_dwordx4 {fr(slot,b*4)}, {v(vXo+b)}, {s(S_X,4)}, {s(sXo)} offen")
        for i in range(4):
            k(f"buffer_load_dwordx4 {fr(slot,16+i*4)}, {v(vWo)}, {s(S_W,4)}, {s(sWo)} offen offset:{1024*i}")
        k(f"buffer_load_dwordx4 {fr(slot,32)}, {v(vWh)}, {s(S_W,4)}, {s(sWo)} offen")
        k(f"s_add_u32 {s(sXo)}, {s(sXo)}, 4096")
        k(f"s_add_u32 {s(sWo)}, {s(sWo)}, {4*4608}")

    for sl in range(D):
        issue(sl)
    vA_ = 240
    aRes, aCs = nagpr, nagpr + 12
    srd(k, S_O, sOp, out_off, 2048 * 1152)
    srd(k, S_E, sWS, WS_HF, WS_STAT - WS_HF + 2048 * 64)
    k(f"s_lshl_b32 {s(sM0+10)}, {s(sRT)}, 6")
    k(f"s_mul_i32 {s(sM0+10)}, {s(sM0+10)}, 1152")
    k(f"s_mul_i32 {s(sM0+11)}, {s(sRT)}, {4*18432}")
    sNat, sXF = sM0 + 10, sM0 + 11
    k(f"s_lshl_b32 {s(sOwn)}, {s(sCT)}, 3")
    k(f"s_add_u32 {s(sT)}, {s(sCT)}, 64")
    nside = 0
    if extras:
        srd(k, S_R, sRp, res_off, 2048 * 1152)
        k(f"v_mul_u32_u24 {v(vA_)}, {PITCH}, {v(vLane)}")
        k(f"v_mul_u32_u24 {v(vA_+1)}, 1152, {v(vLane)}")
        k(f"v_lshrrev_b32 {v(vT)}, 4, {v(vLane)}")
        k(f"v_mul_u32_u24 {v(vA_+2)}, 18432, {v(vT)}")
        k(f"v_and_b32 {v(vT)}, 15, {v(vLane)}")
        k(f"v_lshl_add_u32 {v(vA_+2)}, {v(vT)}, 4, {v(vA_+2)}")
        k(f"s_add_u32 {s(sOwn)}, {s(sOwn)}, {s(sWV)}")
        k(f"s_lshl_b32 {s(sCnt)}, {s(sOwn)}, 4")
        k(f"s_add_u32 {s(sCnt)}, {s(sCnt)}, {s(sNat)}")
        k(f"buffer_load_dwordx4 {a(aRes,4)}, {v(vA_+1)}, {s(S_R,4)}, {s(sCnt)} offen")
        k(f"buffer_load_dwordx4 {a(aRes+4,4)}, {v(vA_+1)}, {s(S_R,4)}, {s(sCnt)} offen offset:64")
        k(f"s_lshl_b32 {s(sCnt)}, {s(sT)}, 4")
        k(f"s_add_u32 {s(sCnt)}, {s(sCnt)}, {s(sNat)}")
        k(f"buffer_load_dwordx4 {a(aRes+8,4)}, {v(vA_+1)}, {s(S_R,4)}, {s(sCnt)} offen")
        srd(k, S_R, sWS, WS_CSP, 18 * 9216 * 4)
        k(f"v_lshlrev_b32 {v(vA_+3)}, 2, {v(vLane)}")
        k(f"v_cmp_gt_u32 vcc, 9, {v(vLane)}")
        k(f"v_mov_b32 {v(vT)}, 0x7f000000")
        k(f"v_cndmask_b32 {v(vA_+3)}, {v(vT)}, {v(vA_+3)}, vcc")
        k(f"s_lshl_b32 {s(sM0+12)}, s2, 2")
        k(f"s_add_u32 {s(sM0+12)}, {s(sM0+12)}, {s(sWV)}")
        k(f"s_mul_i32 {s(sM0+12)}, {s(sM0+12)}, 36")
        k(f"s_mov_b32 {s(sCnt)}, {s(sM0+12)}")
        for j in range(18):
            k(f"buffer_load_dword {a(aCs+j)}, {v(vA_+3)}, {s(S_R,4)}, {s(sCnt)} offen")
            if j < 17: k(f"s_add_u32 {s(sCnt)}, {s(sCnt)}, {9216*4}")
        srd(k, S_R, sWS, WS_CS, 9216 * 4)
        nside = 21
    else:
        for r in range(3):
            vI, vRow, vC8, vE = vT, vT + 1, vT + 2, vT + 3
            vL, vG = vA_ + r, vA_ + 3 + r
            k(f"v_add_u32 {v(vI)}, {256*r}, v0")
            k(f"v_mul_u32_u24 {v(vRow)}, 1821, {v(vI)}")
            k(f"v_lshrrev_b32 {v(vRow)}, 14, {v(vRow)}")
            k(f"v_mul_u32_u24 {v(vC8)}, 9, {v(vRow)}")
            k(f"v_sub_u32 {v(vC8)}, {v(vI)}, {v(vC8)}")
            k(f"v_mul_u32_u24 {v(vL)}, {PITCH}, {v(vRow)}")
            k(f"v_lshl_add_u32 {v(vL)}, {v(vC8)}, 5, {v(vL)}")
            k(f"v_cmp_eq_u32 vcc, 8, {v(vC8)}")
            k(f"v_add_u32 {v(vC8)}, {s(sOwn)}, {v(vC8)}")
            k(f"v_mov_b32 {v(vG)}, {s(sT)}")
            k(f"v_cndmask_b32 {v(vC8)}, {v(vC8)}, {v(vG)}, vcc")
            k(f"v_mul_u32_u24 {v(vG)}, 1152, {v(vRow)}")
            k(f"v_lshl_add_u32 {v(vG)}, {v(vC8)}, 4, {v(vG)}")
            k(f"v_lshrrev_b32 {v(vE)}, 4, {v(vRow)}")
            k(f"v_mul_u32_u24 {v(vE)}, 18432, {v(vE)}")
            k(f"v_lshl_add_u32 {v(vE)}, {v(vC8)}, 8, {v(vE)}")
            k(f"v_and_b32 {v(vRow)}, 15, {v(vRow)}")
            k(f"v_lshl_add_u32 {v(vE)}, {v(vRow)}, 4, {v(vE)}")
            if r == 2:
                k(f"v_cmp_gt_u32 vcc, 576, {v(vI)}")
                k(f"v_mov_b32 {v(vRow)}, 0x7f000000")
                k(f"v_cndmask_b32 {v(vG)}, {v(vRow)}, {v(vG)}, vcc")
                k(f"v_cndmask_b32 {v(vL)}, 0, {v(vL)}, vcc")
                k(f"v_cndmask_b32 {v(vE)}, {v(vRow)}, {v(vE)}, vcc")
            k(f"buffer_load_dwordx4 {a(aRes+4*r,4)}, {v(vE)}, {s(S_E,4)}, {s(sXF)} offen")
        nside = 3
    k(f"v_and_b32 {v(vT)}, 15, {v(vLane)}")
    k(f"v_mul_u32_u24 {v(vT)}, {PITCH}, {v(vT)}")
    k(f"v_lshrrev_b32 {v(vT+1)}, 4, {v(vLane)}")
    k(f"v_lshl_add_u32 {v(vT)}, {v(vT+1)}, 4, {v(vT)}")
    k(f"v_add_u32 {v(vA_+8)}, {s(sM0)}, {v(vT)}")
    for i in range(80):
        k(f"v_mov_b32 {v(vAcc+i)}, 0")

    def step(slot, outstanding_after, do_issue):
        if do_issue:
            issue((slot + D) % NS)
            outstanding_after += 1
        k(f"s_waitcnt vmcnt({9*outstanding_after})")
        for cb in range(5):
            for rb in range(4 if 'nomfma' not in exp else 0):
                acc = v(vAcc + (cb * 4 + rb) * 4, 4)
                k(f"v_mfma_f32_16x16x32_bf16 {acc}, {fr(slot,16+cb*4)}, {fr(slot,rb*4)}, {acc}")

    if 'stamp' in exp:
        k(f"s_waitcnt vmcnt({9*(D-1)})"); st_.stamp()
    nloop = NST // NS - 1
    k(f"s_mov_b32 {s(sCnt)}, {nloop}")
    loop = k.newlabel("loop")
    k.label(loop)
    for sl in range(NS):
        step(sl, D - 1, True)
    k(f"s_sub_u32 {s(sCnt)}, {s(sCnt)}, 1")
    k(f"s_cmp_lg_u32 {s(sCnt)}, 0")
    k(f"s_cbranch_scc1 {loop}")
    k.check_loop(loop)
    for sl in range(NS):
        if sl + D < NS:
            step(sl, D - 1, True)
        else:
            step(sl, NS - 1 - sl, False)
    st_.stamp()
    for cb in range(5):
        for rb in range(4):
            k(f"ds_write_b128 {v(vA_+8)}, {v(vAcc+(cb*4+rb)*4,4)} offset:{rb*16*PITCH+cb*64}")
    STAT_L = 4 * WREG
    if extras:
        b = vF + 144
        for j in range(18): k(f"v_accvgpr_read_b32 {v(vF+j)}, {a(aCs+j)}")
        for j in range(1, 18): k(f"v_add_f32 {v(vF)}, {v(vF)}, {v(vF+j)}")
        k(f"buffer_store_dword {v(vF)}, {v(vA_+3)}, {s(S_R,4)}, {s(sM0+12)} offen")
        k(f"s_lshl_b32 {s(sCnt)}, {s(sWV)}, 5")
        k(f"v_add_u32 {v(vA_+4)}, {s(sCnt)}, {v(vA_)}")
        k(f"s_lshl_b32 {s(sOwn)}, {s(sOwn)}, 8")
        k(f"s_add_u32 {s(sOwn)}, {s(sOwn)}, {s(sXF)}")
        k(f"s_lshl_b32 {s(sT)}, {s(sT)}, 8")
        k(f"s_add_u32 {s(sT)}, {s(sT)}, {s(sXF)}")
        k(f"v_mov_b32 {v(vA_+6)}, 0"); k(f"v_mov_b32 {v(vA_+7)}, 0")
    k("s_waitcnt lgkmcnt(0)")
    k("s_barrier")
    def rnd_read(r):
        vP = vF + 20 + r * 40
        for w in range(4):
            if extras:
                ad, o = (vA_ + 4, 128 * r) if r < 2 else (vA_, 256)
            else: ad, o = vA_ + r, 0
            k(f"ds_read_b128 {v(vP+w*8,4)}, {v(ad)} offset:{w*WREG+o}")
            k(f"ds_read_b128 {v(vP+w*8+4,4)}, {v(ad)} offset:{w*WREG+o+16}")
    def rnd_fin(r, wait):
        vP = vF + 20 + r * 40; vRs = vP + 32
        for j in range(4): k(f"v_accvgpr_read_b32 {v(vRs+j)}, {a(aRes+4*r+j)}")
        k(f"s_waitcnt lgkmcnt({wait})")
        for j in range(8):
            k(f"v_add_f32 {v(vP+j)}, {v(vP+j)}, {v(vP+8+j)}")
            k(f"v_add_f32 {v(vP+16+j)}, {v(vP+16+j)}, {v(vP+24+j)}")
        for j in range(8):
            k(f"v_add_f32 {v(vP+j)}, {v(vP+j)}, {v(vP+16+j)}")
        for j in range(4):
            k(f"v_cvt_pk_bf16_f32 {v(vP+8+j)}, {v(vP+2*j)}, {v(vP+2*j+1)}")
        for j in range(4):
            k(f"v_lshlrev_b32 {v(vP+2*j)}, 16, {v(vP+8+j)}")
            k(f"v_and_b32 {v(vP+2*j+1)}, 0xffff0000, {v(vP+8+j)}")
            k(f"v_lshlrev_b32 {v(vP+16+2*j)}, 16, {v(vRs+j)}")
            k(f"v_and_b32 {v(vP+16+2*j+1)}, 0xffff0000, {v(vRs+j)}")
        for j in range(8):
            k(f"v_add_f32 {v(vP+j)}, {v(vP+j)}, {v(vP+16+j)}")
        for j in range(4):
            k(f"v_cvt_pk_bf16_f32 {v(vP+8+j)}, {v(vP+2*j)}, {v(vP+2*j+1)}")
        if not extras:
            k(f"buffer_store_dwordx4 {v(vP+8,4)}, {v(vA_+3+r)}, {s(S_O,4)}, {s(sNat)} offen")
        else:
            k(f"buffer_store_dwordx4 {v(vP+8,4)}, {v(vA_+2)}, {s(S_E,4)}, {s(sOwn if r < 2 else sT)} offen offset:{1024 if r == 1 else 0}")
            for j in range(4):
                k(f"v_lshlrev_b32 {v(vP+2*j)}, 16, {v(vP+8+j)}")
                k(f"v_and_b32 {v(vP+2*j+1)}, 0xffff0000, {v(vP+8+j)}")
            for j in range(8):
                k(f"v_add_f32 {v(vA_+6)}, {v(vA_+6)}, {v(vP+j)}")
                k(f"v_fmac_f32 {v(vA_+7)}, {v(vP+j)}, {v(vP+j)}")
    if not extras:
        for r in range(3): rnd_read(r)
        for r in range(3): rnd_fin(r, [15, 8, 0][r])
    else:
        rnd_read(0); rnd_read(1)
        rnd_fin(0, 8); rnd_fin(1, 0)
        l2 = k.newlabel("nor2")
        k(f"s_cmp_lg_u32 {s(sWV)}, 0")
        k(f"s_cbranch_scc1 {l2}")
        rnd_read(2); rnd_fin(2, 0)
        k.label(l2)
        k(f"v_lshlrev_b32 {v(vT)}, 3, v0")
        k(f"v_add_u32 {v(vT)}, {STAT_L}, {v(vT)}")
        k(f"ds_write_b64 {v(vT)}, {v(vA_+6,2)}")
        k(f"s_lshl_b32 {s(sT)}, {s(sRT)}, 12")
        k(f"s_lshl_b32 {s(sOwn)}, {s(sCT)}, 3")
        k(f"s_add_u32 {s(sT)}, {s(sT)}, {s(sOwn)}")
        k(f"s_add_u32 {s(sT)}, {s(sT)}, {WS_STAT-WS_HF}")
        k(f"v_lshlrev_b32 {v(vT+1)}, 6, {v(vLane)}")
        k("s_waitcnt lgkmcnt(0)")
        k("s_barrier")
        k(f"s_cmp_lg_u32 {s(sWV)}, 0")
        k(f"s_cbranch_scc1 {done}")
        for j in range(1, 4):
            k(f"ds_read_b64 {v(vF+2*j,2)}, {v(vT)} offset:{512*j}")
        k("s_waitcnt lgkmcnt(0)")
        for j in range(1, 4):
            k(f"v_add_f32 {v(vA_+6)}, {v(vA_+6)}, {v(vF+2*j)}")
            k(f"v_add_f32 {v(vA_+7)}, {v(vA_+7)}, {v(vF+2*j+1)}")
        k(f"buffer_store_dwordx2 {v(vA_+6,2)}, {v(vT+1)}, {s(S_E,4)}, {s(sT)} offen")
    k.label(done)
    k("s_endpgm")
    return k, 252, 4 * WREG + 2048, nagpr + 32
```
